```python
import torch

def _softmax(x, axis=-1):
    return torch.softmax(x, dim=axis)
def _gelu(x):
    return torch.nn.functional.gelu(x, approximate="tanh")
def _silu(x):
    return torch.nn.functional.silu(x)
def _sigmoid(x):
    return torch.sigmoid(x)
def _layernorm(x, axis=-1, eps=1e-5):
    m = x.mean(dim=axis, keepdim=True)
    v = x.var(dim=axis, keepdim=True, unbiased=False)
    return (x - m) / torch.sqrt(v + eps)
def _scatter_add(tgt, idx, src, axis=0):
    return tgt.clone().index_add_(axis, idx, src)
def _segment_sum(src, seg, n):
    out = torch.zeros((n,) + src.shape[1:], dtype=src.dtype)
    return out.index_add_(0, seg, src)
def _pad(x, pw):
    flat = tuple(v for pair in reversed(pw) for v in pair)
    return torch.nn.functional.pad(x, flat)

kernel_name = 'sequential_preLN__compressed_kv_cla__geglu_ffn__prompt'

def setup_inputs():

    _w = (lambda a: (lambda t: t.to(torch.bfloat16) if t.is_floating_point() else t)(torch.as_tensor(a)))
    def _A_setup():
        B, H, Sq, Sk, D, M = 1, 16, 2048, 2048, 256, 448
        Dc = 4 * D
        return {
            "x": _w((lambda *s: torch.randn(*s, dtype=torch.bfloat16) * 0.05)(B, Sq, M)),
            "c_kv": _w((lambda *s: torch.randn(*s, dtype=torch.bfloat16) * 0.4)(B, Sk, Dc)),
            "w_q": _w((lambda *s: torch.randn(*s, dtype=torch.bfloat16) * 3.2)(M, H, D) * (M ** -0.5)),
            "w_uk": _w((lambda *s: torch.randn(*s, dtype=torch.bfloat16) * 3.2)(Dc, H, D) * (Dc ** -0.5)),
            "w_uv": _w((lambda *s: torch.randn(*s, dtype=torch.bfloat16) * 0.4)(Dc, H, D) * (Dc ** -0.5)),
            "w_o": _w((lambda *s: torch.randn(*s, dtype=torch.bfloat16) * 0.4)(H, D, M) * ((H * D) ** -0.5)),
        }
    _A_in = _A_setup()

    def _B_setup():
        B, S, D, F = 1, 2048, 448, 1792
        return {
            "x": _w((lambda *s: torch.randn(*s, dtype=torch.bfloat16) * 0.05)(B, S, D)),
            "w_gate": _w((lambda *s: torch.randn(*s, dtype=torch.bfloat16) * 0.05)(D, F)),
            "w_up": _w((lambda *s: torch.randn(*s, dtype=torch.bfloat16) * 0.05)(D, F)),
            "w_down": _w((lambda *s: torch.randn(*s, dtype=torch.bfloat16) * 0.05)(F, D)),
        }
    _B_in = _B_setup()

    return {
        "A_x": _A_in["x"],
        "A_c_kv": _A_in["c_kv"],
        "A_w_q": _A_in["w_q"],
        "A_w_uk": _A_in["w_uk"],
        "A_w_uv": _A_in["w_uv"],
        "A_w_o": _A_in["w_o"],
        "B_x": _B_in["x"],
        "B_w_gate": _B_in["w_gate"],
        "B_w_up": _B_in["w_up"],
        "B_w_down": _B_in["w_down"],
    }

def reference(A_x, A_c_kv, A_w_q, A_w_uk, A_w_uv, A_w_o, B_x, B_w_gate, B_w_up, B_w_down):
    def _A_ref(x, c_kv, w_q, w_uk, w_uv, w_o):
        B, Sq, M = x.shape[0], x.shape[1], x.shape[2]
        Sk = c_kv.shape[1]
        H, D = w_q.shape[1], w_q.shape[2]
        q = torch.einsum("bqm,mhd->bhqd", x, w_q)
        k = torch.einsum("bkc,chd->bhkd", c_kv, w_uk)
        v = torch.einsum("bkc,chd->bhkd", c_kv, w_uv)
        scores = torch.einsum("bhqd,bhkd->bhqk", q, k) * (D ** -0.5)
        off = Sk - Sq
        qi = torch.arange(Sq)[:, None]
        kj = torch.arange(Sk)[None, :]
        cmask = kj <= (qi + off)
        scores = torch.where(cmask[None, None], scores, -1e9)
        p = _softmax(scores, axis=-1)
        ctx = torch.einsum("bhqk,bhkd->bhqd", p, v)
        return torch.einsum("bhqd,hdm->bqm", ctx, w_o)

    def _B_ref(x, w_gate, w_up, w_down):
        return (_gelu(x @ w_gate) * (x @ w_up)) @ w_down

    x = A_x
    h = x + _A_ref(_layernorm(x, axis=-1), A_c_kv, A_w_q, A_w_uk, A_w_uv, A_w_o)
    h2 = h + _B_ref(_layernorm(h, axis=-1), B_w_gate, B_w_up, B_w_down)
    return h2
```

```python
import re

class Asm:
    def __init__(self):
        self.lines = []
    def __call__(self, s):
        for l in s.split('\n'):
            l = l.rstrip()
            if l.strip():
                self.lines.append(l)
    def label(self, name):
        self.lines.append(name + ':')
    def extend(self, lst):
        for l in lst:
            self(l)
    def text(self):
        out = []
        for l in self.lines:
            s = l.strip()
            if s.endswith(':') or s.startswith('.') or s.startswith(';'):
                out.append(s)
            else:
                out.append('  ' + s)
        return '\n'.join(out) + '\n'

def vr(base, n=1):
    return f'v{base}' if n == 1 else f'v[{base}:{base+n-1}]'
def ar(base, n=1):
    return f'a{base}' if n == 1 else f'a[{base}:{base+n-1}]'
def sr(base, n=1):
    return f's{base}' if n == 1 else f's[{base}:{base+n-1}]'

class R:
    def __init__(self, kind, base, n=1):
        self.kind, self.base, self.n = kind, base, n
    def __str__(self):
        if self.n == 1:
            return f'{self.kind}{self.base}'
        return f'{self.kind}[{self.base}:{self.base+self.n-1}]'
    def sub(self, off, n=1):
        assert off + n <= self.n, (off, n, self.n)
        return R(self.kind, self.base + off, n)
    def __getitem__(self, i):
        return self.sub(i, 1)

def interleave(main, fillers, start=0, per_gap=None):
    n = len(main) - start
    out = []
    k = 0
    nf = len(fillers)
    for i, m in enumerate(main):
        out.append(m)
        if i >= start:
            j = i - start + 1
            tgt = (nf * j + n - 1) // n if per_gap is None else min(nf, per_gap * j)
            while k < tgt:
                f = fillers[k]
                if isinstance(f, (list, tuple)):
                    out.extend(f)
                else:
                    out.append(f)
                k += 1
    while k < nf:
        f = fillers[k]
        if isinstance(f, (list, tuple)):
            out.extend(f)
        else:
            out.append(f)
        k += 1
    return out

def place(main, slots):
    out = []
    out.extend(slots.get(-1, []))
    for i, m in enumerate(main):
        out.append(m)
        out.extend(slots.get(i, []))
    return out

_reg_re = re.compile(r'\b([vas])\[(\d+):(\d+)\]|\b([vas])(\d+)\b|\b(vcc|exec|m0|scc)\b')

def regs_of(tok):
    out = []
    for m in _reg_re.finditer(tok):
        if m.group(1):
            out += [(m.group(1), i) for i in range(int(m.group(2)), int(m.group(3)) + 1)]
        elif m.group(4):
            out.append((m.group(4), int(m.group(5))))
        else:
            out.append((m.group(6), 0))
    return out

TRANS = ('v_exp_f32', 'v_log_f32', 'v_rcp_f32', 'v_rsq_f32', 'v_sqrt_f32', 'v_sin_f32', 'v_cos_f32')

def parse(line):
    s = line.split(';')[0].strip()
    if not s or s.endswith(':') or s.startswith('.'):
        return None
    parts = s.split(None, 1)
    op = parts[0]
    ops = [x.strip() for x in parts[1].split(',')] if len(parts) > 1 else []
    d = dict(op=op, text=s, ops=ops)
    base = re.sub(r'_e(32|64)$', '', op)
    d['base'] = base
    if op.startswith('v_mfma'):
        d['cls'] = 'mfma'
        d['passes'] = 8 if '32x32x16' in op else (4 if '16x16x32' in op else 16)
        d['dst'] = regs_of(ops[0]); d['a'] = regs_of(ops[1]); d['b'] = regs_of(ops[2]); d['c'] = regs_of(ops[3])
        d['src'] = d['a'] + d['b'] + d['c']
    elif op.startswith('v_'):
        d['cls'] = 'valu'
        d['trans'] = base in TRANS
        if base.startswith('v_cmp'):
            d['dst'] = regs_of(ops[0]); d['src'] = sum([regs_of(o) for o in ops[1:]], [])
        elif base in ('v_permlane32_swap_b32', 'v_permlane16_swap_b32', 'v_swap_b32'):
            d['dst'] = regs_of(ops[0]) + regs_of(ops[1]); d['src'] = list(d['dst'])
        elif base in ('v_add_co_u32', 'v_addc_co_u32', 'v_sub_co_u32'):
            d['dst'] = regs_of(ops[0]) + regs_of(ops[1]); d['src'] = sum([regs_of(o) for o in ops[2:]], [])
        else:
            d['dst'] = regs_of(ops[0]); d['src'] = sum([regs_of(o) for o in ops[1:]], [])
            if base.startswith('v_fmac') or base.startswith('v_dot2c') or base in ('v_pk_fmac_f16',):
                d['src'] += d['dst']
            if base == 'v_cndmask_b32' and len(ops) == 3:
                d['src'].append(('vcc', 0))
            if base == 'v_writelane_b32':
                d['src'] += d['dst']
    elif op.startswith('ds_'):
        d['cls'] = 'ds'
        if op.startswith('ds_read') or op.startswith('ds_bpermute') or op.startswith('ds_swizzle') or op.startswith('ds_permute'):
            d['dst'] = regs_of(ops[0]); d['src'] = sum([regs_of(o) for o in ops[1:]], [])
        else:
            d['dst'] = []; d['src'] = sum([regs_of(o) for o in ops], [])
    elif op.startswith('buffer_') or op.startswith('global_'):
        d['cls'] = 'vmem'
        islds = ' lds' in s
        d['lds'] = islds
        if 'load' in op and not islds:
            d['dst'] = regs_of(ops[0]); d['src'] = sum([regs_of(o) for o in ops[1:]], [])
        elif 'atomic' in op and (' sc0' in s):
            d['dst'] = regs_of(ops[0]) if op.startswith('buffer_') else regs_of(ops[0])
            d['src'] = sum([regs_of(o) for o in ops], [])
        else:
            d['dst'] = []; d['src'] = sum([regs_of(o) for o in ops], [])
        d['store'] = 'store' in op
        d['wide'] = ('x4' in op or 'x3' in op)
        if d['store']:
            d['data'] = regs_of(ops[0]) if op.startswith('buffer_') else regs_of(ops[1])
    elif op.startswith('s_'):
        d['cls'] = 'salu'
        if op in ('s_nop', 's_waitcnt', 's_barrier', 's_endpgm', 's_setprio', 's_sleep') or op.startswith('s_cbranch') or op == 's_branch':
            d['dst'] = []; d['src'] = []
        elif op.startswith('s_cmp') or op.startswith('s_bitcmp'):
            d['dst'] = []; d['src'] = sum([regs_of(o) for o in ops], [])
        else:
            d['dst'] = regs_of(ops[0]) if ops else []
            d['src'] = sum([regs_of(o) for o in ops[1:]], [])
            if 'saveexec' in op:
                d['dst'] = d['dst'] + [('exec', 0)]
    else:
        raise ValueError('cannot parse ' + line)
    return d

def check_hazards(lines, name='', verbose=True):
    ins = [p for p in (parse(l) for l in lines) if p is not None]
    viol = []
    n = len(ins)
    ws = []
    acc = 0
    for d in ins:
        ws.append(acc)
        if d['op'] == 's_nop':
            acc += int(d['ops'][0], 0) + 1
        else:
            acc += 1
    def dist(i, j):
        return ws[j] - ws[i] - 1
    lastw = {}
    lastCread = {}
    laststore = {}
    def V(i, j, need, why):
        if dist(i, j) < need:
            viol.append(f'{name}: need {need} got {dist(i,j)}: {why}\n    [{i}] {ins[i]["text"]}\n    [{j}] {ins[j]["text"]}')
    for j, d in enumerate(ins):
        cls = d['cls']
        src = d.get('src', []); dst = d.get('dst', [])
        for r in set(src):
            if r not in lastw: continue
            i = lastw[r]; p = ins[i]
            if p['cls'] == 'mfma':
                P = p['passes']
                if cls == 'mfma':
                    if r in d['c'] and r not in d['a'] and r not in d['b']:
                        if p['dst'] == d['c'] and p['passes'] == d['passes']:
                            if P == 2: V(i, j, 2, 'mfma D->C')
                        else:
                            V(i, j, {2:4,4:6,8:10,16:18}[P], 'mfma D->C partial overlap')
                    else:
                        V(i, j, {2:5,4:8,8:12,16:20}[P], 'mfma D->A/B')
                elif cls in ('valu', 'vmem', 'ds'):
                    V(i, j, {2:5,4:8,8:12,16:20}[P], 'mfma D->VALU/mem read')
            elif p['cls'] == 'valu':
                if cls == 'mfma' and r[0] in 'va':
                    V(i, j, 2, 'VALU->MFMA')
                if r[0] in ('s', 'vcc'):
                    if cls == 'vmem': V(i, j, 5, 'VALU sgpr->VMEM')
                    elif cls == 'valu':
                        if d['base'] in ('v_readlane_b32', 'v_writelane_b32') :
                            V(i, j, 4, 'VALU sgpr->lane select')
                        else:
                            V(i, j, 2, 'VALU sgpr/vcc->VALU const')
                if r[0] == 'exec' and cls == 'valu' and ('dpp' in d['text'] or 'row_' in d['text']):
                    V(i, j, 5, 'exec->dpp')
                if r[0] in 'va' and cls == 'valu':
                    if p.get('trans') and not d.get('trans'):
                        V(i, j, 1, 'trans->VALU')
                    if d['base'] in ('v_readlane_b32', 'v_readfirstlane_b32'):
                        V(i, j, 1, 'VALU->readlane')
                    if d['base'].startswith('v_permlane'):
                        V(i, j, 2, 'VALU->permlane')
                    if 'row_' in d['text'] or 'quad_perm' in d['text'] or ' dpp' in d['text']:
                        V(i, j, 2, 'VALU->DPP')
                    if ('op_sel' in p['text'] or 'sdwa' in p['text']):
                        V(i, j, 1, 'opsel->VALU')
            elif p['cls'] == 'salu':
                if r[0] == 'm0' and cls == 'vmem' and d.get('lds'):
                    V(i, j, 1, 'm0->lds dma')
        if cls == 'vmem' and d.get('lds') and ('m0', 0) in lastw:
            i = lastw[('m0', 0)]
            if ins[i]['cls'] == 'salu': V(i, j, 1, 'm0->lds dma')
        if cls == 'mfma' and ('exec', 0) in lastw:
            i = lastw[('exec', 0)]
            if ins[i]['cls'] == 'valu': V(i, j, 4, 'valu exec->mfma')
        for r in set(dst):
            if r in lastw:
                i = lastw[r]; p = ins[i]
                if p['cls'] == 'mfma':
                    P = p['passes']
                    if cls in ('valu', 'vmem', 'ds'):
                        V(i, j, {2:5,4:8,8:12,16:20}[P], 'mfma D->VALU/load write (WAW)')
                    elif cls == 'mfma' and not (r in d['c']):
                        V(i, j, {2:4,4:6,8:10,16:18}[P], 'mfma D->mfma D (WAW, no chain)')
            if r in lastCread and cls == 'valu':
                i = lastCread[r]
                V(i, j, {2:1,4:3,8:7,16:15}[ins[i]['passes']], 'mfma C read -> VALU write (WAR)')
            if r in laststore and cls in ('valu', 'mfma', 'ds', 'vmem'):
                i = laststore[r]
                V(i, j, 2 if cls == 'valu' else 1, 'wide store data WAR')
        for r in dst:
            lastw[r] = j
        if cls == 'mfma':
            for r in d['c']:
                lastCread[r] = j
        if cls == 'vmem' and d.get('store') and d.get('wide'):
            for r in d['data']:
                laststore[r] = j
    if verbose:
        for v in viol[:8]: print(v)
    return viol

class Ins:
    __slots__ = ('t', 'lds', 'need', 'vm', 'vneed')
    def __init__(self, t, lds=None, need=(), vm=None, vneed=()):
        self.t = t; self.lds = lds; self.need = tuple(need); self.vm = vm; self.vneed = tuple(vneed)

class Stream:
    def __init__(self, A, q=None, vq=None):
        self.A = A
        self.q = list(q or [])
        self.vq = list(vq or [])
    def wait_vm(self, *tags):
        idx = -1
        for k, x in enumerate(self.vq):
            if x in tags: idx = k
        if idx >= 0:
            n = len(self.vq) - 1 - idx
            assert n <= 63
            self.A(f's_waitcnt vmcnt({n})')
            self.vq = self.vq[idx + 1:]
    def emit(self, ins):
        if isinstance(ins, str):
            ins = Ins(ins)
        if ins.need:
            idx = -1
            for t in ins.need:
                for k, x in enumerate(self.q):
                    if x == t and k > idx:
                        idx = k
            if idx >= 0:
                n = len(self.q) - 1 - idx
                assert n <= 15, ('lgkmcnt overflow', n)
                self.A(f's_waitcnt lgkmcnt({n})')
                self.q = self.q[idx + 1:]
        self.A(ins.t)
        if ins.lds is not None:
            self.q.append(ins.lds)
        if ins.vm is not None:
            self.vq.append(ins.vm)
    def emit_all(self, lst):
        for x in lst:
            self.emit(x)
    def drain(self):
        if self.q:
            self.A('s_waitcnt lgkmcnt(0)')
        self.q = []

def gapfill(mfmas, fillers):
    out = list(fillers.get(-1, []))
    for i, m in enumerate(mfmas):
        out.append(m)
        out.extend(fillers.get(i, []))
    return out

def kernel_header(A, name):
    A('.text'); A(f'.globl {name}'); A('.p2align 8'); A(f'.type {name},@function'); A.label(name)

def kernel_desc(A, name, nvgpr=512, accum=256, nsgpr=102):
    A('.section .rodata,"a"'); A('.p2align 6'); A(f'.amdhsa_kernel {name}')
    A(f'.amdhsa_next_free_vgpr {nvgpr}'); A(f'.amdhsa_next_free_sgpr {nsgpr}'); A(f'.amdhsa_accum_offset {accum}')
    A('.amdhsa_group_segment_fixed_size 0'); A('.amdhsa_kernarg_size 104'); A('.amdhsa_user_sgpr_count 2')
    A('.amdhsa_user_sgpr_kernarg_segment_ptr 1'); A('.amdhsa_system_sgpr_workgroup_id_x 1'); A('.end_amdhsa_kernel')

def mfma16(d, a, b, c, need=()):
    return Ins(f'v_mfma_f32_16x16x32_bf16 {d}, {a}, {b}, {c}', need=need)

def srd(A, s, ptr_lo, ptr_hi, size, add=0):
    if add:
        A(f's_add_u32 s{s}, {ptr_lo}, {add}')
        A(f's_addc_u32 s{s+1}, {ptr_hi}, 0')
    else:
        A(f's_mov_b32 s{s}, {ptr_lo}')
        A(f's_mov_b32 s{s+1}, {ptr_hi}')
    A(f's_mov_b32 s{s+2}, {size}')
    A(f's_mov_b32 s{s+3}, 0x00020000')

WS_K    = 0
WS_V    = 16 << 20
WS_Q    = 32 << 20
WS_PART = 48 << 20
WS_BO   = 80 << 20
WS_ST   = 96 << 20
WS_FLAG = 97 << 20
WS_H    = 100 << 20
WS_HN   = 104 << 20
WS_HID  = 108 << 20


class Stamps:
    def __init__(self, enabled, base=72):
        self.on = enabled; self.base = base; self.n = 0
    def stamp(self, A):
        if not self.on: return
        b = self.base; c = b + 4 + 2*self.n
        assert c + 1 < 102
        A(f's_memrealtime s[{b}:{b+1}]'); A(f's_memtime s[{b+2}:{b+3}]'); A('s_waitcnt lgkmcnt(0)')
        A(f's_mov_b32 s{c}, s{b}'); A(f's_mov_b32 s{c+1}, s{b+2}')
        self.n += 1
    def dump(self, A, ws_lo, ws_hi, wave_sgpr, label):
        if not self.on: return
        A(f's_cmp_lg_u32 s{wave_sgpr}, 0'); A(f's_cbranch_scc1 {label}')
        A(f's_add_u32 s4, {ws_lo}, 0xC000000'); A(f's_addc_u32 s5, {ws_hi}, 0')
        A('s_mov_b32 s6, 0x100000'); A('s_mov_b32 s7, 0x00020000')
        A('s_lshl_b32 s8, s2, 7'); A('v_mov_b32 v2, s8')
        A('s_mov_b64 exec, 1')
        for i in range(self.n):
            b = self.base + 4 + 2*i
            A(f'v_mov_b32 v4, s{b}'); A(f'v_mov_b32 v5, s{b+1}')
            A(f'buffer_store_dwordx2 v[4:5], v2, s[4:7], 0 offen offset:{8*i}')
            A('s_nop 1')
        A.label(label)
```

```python
from asmlib import *

LOG2E = 1.4426950408889634
import struct
def fbits(x): return '0x%08x' % struct.unpack('<I', struct.pack('<f', x))[0]

S_C, S_W, S_WQ, S_X, S_OUT, S_Q = 4, 8, 12, 16, 20, 24
sW, sWR, sWC = 28, 29, 30
sKIND = 31
sCRD, sCWR, sCOFF = 32, 33, 34
sWOFF = 35
sWB = 48
sCB = 49
sIT = 50
sT0, sT1, sT2, sT3 = 52, 53, 54, 55
sTMP = 56
vLANE16 = 1
vCL = [2, 3]; vCA = 4
vWA = list(range(5, 13))
vDC = list(range(13, 17)); vDW = list(range(17, 21))
vST = [21, 22]
vT = list(range(23, 32))
ACCV = 32
def acc_tile(idx):
    return R('v', ACCV + 4*idx, 4) if idx < 56 else R('a', 4*(idx-56), 4)
def kv_tile(tb, db): return acc_tile(db*8 + tb)
CF = [[R('a', 32 + p*32 + 4*tb, 4) for tb in range(8)] for p in range(2)]
WR = [R('a', 96 + 4*i, 4) for i in range(4)]
XN = [[R('a', 112 + (qb*14 + s)*4, 4) for s in range(14)] for qb in range(2)]
WBASE = 98304

def w_dma(srdw, slot, soff):
    l = [f's_add_u32 m0, s{sWB}, {slot*16384}']
    l += [f'buffer_load_dwordx4 v{vDW[j]}, s[{srdw}:{srdw+3}], {soff} offen offset:{1024*j} lds' for j in range(4)]
    return l
def c_dma(hf):
    l = [f's_add_u32 m0, s{sCWR}, {4096*hf}' ]
    l += [f'buffer_load_dwordx4 v{vDC[j]}, s[{S_C}:{S_C+3}], s{sTMP+hf} offen offset:{1024*j} lds' for j in range(4)]
    return l

def w_read(dst, db, slot, tag):
    return [Ins(f'ds_read_b64_tr_b16 {dst.sub(0,2)}, v{vWA[db & 7]} offset:{slot*16384 + (db >> 3)*256}', lds=tag + 'a'),
            Ins(f'ds_read_b64_tr_b16 {dst.sub(2,2)}, v{vWA[db & 7]} offset:{slot*16384 + (db >> 3)*256 + 2048}', lds=tag + 'b')]

def kv_kstep(st, kind, t, first=False, wsrc=None, cdma=True, nextc=True, nextw=True, vm=12):
    A = st.A
    p = t & 1
    fill = {g: [] for g in range(-1, 64)}
    if t & 1:
        fill[-1] += [f's_add_u32 s{sCWR}, s{sCRD}, s{sCB}',
                     f's_add_u32 s{sCRD}, s{sCRD}, 0x8000',
                     f's_cmp_eq_u32 s{sCRD}, 0x18000',
                     f's_cselect_b32 s{sCRD}, 0, s{sCRD}',
                     f's_add_u32 s{sCOFF}, s{sCOFF}, 128',
                     f's_mov_b32 s{sTMP}, s{sCOFF}',
                     f's_add_u32 s{sTMP+1}, s{sCOFF}, 0x10000']
    if nextc:
        fill[-1].append(f'v_add_u32 v{vCA}, s{sCRD}, v{vCL[(t+1) & 1]}')
    mf = []
    for db in range(8):
        w = WR[db % 4]
        for tb in range(8):
            d = kv_tile(tb, db)
            c = '0' if first else d
            need = (f'W{t}_{db}a', f'W{t}_{db}b') if tb == 0 else ()
            if db == 0: need = need + (f'C{t}_{tb}',)
            if kind == 'K': mf.append(mfma16(d, w, CF[p][tb], c, need))
            else:           mf.append(mfma16(d, CF[p][tb], w, c, need))
        g = db*8
        nd = db + 2
        if nd < 8:
            r = w_read(WR[nd % 4], nd, t % 4, f'W{t}_{nd}')
            fill[g] .append(r[0]); fill[g+1].append(r[1])
        elif nextw:
            r = w_read(WR[nd % 4], nd - 8, (t+1) % 4, f'W{(t+1)%4}_{nd-8}')
            fill[g].append(r[0]); fill[g+1].append(r[1])
        if nextc and db < 4:
            for k in range(2):
                tb = 2*db + k
                fill[g+2+k].append(Ins(f'ds_read_b128 {CF[1-p][tb]}, v{vCA} offset:{2048*tb}', lds=f'C{(t+1)%4}_{tb}'))
    if wsrc is not None:
        l = w_dma(wsrc[0], (t+3) % 4, wsrc[1])
        fill[30].append(l[0])
        for j in range(4): fill[34 + 3*j].append(l[1+j])
        fill[45].append(f's_add_u32 {wsrc[1]}, {wsrc[1]}, 0x40000')
    if cdma:
        hf = 0 if (t & 1) else 1
        l = c_dma(hf)
        fill[46].append(l[0])
        for j in range(4): fill[49 + 3*j].append(l[1+j])
    st.emit_all(gapfill(mf, fill))
    A(f's_waitcnt vmcnt({vm})')
    A('s_barrier')

def kv_path(A, kind):
    L = f'k1_{kind}'
    A.label(L)
    st = Stream(A)
    A(f'v_add_u32 v{vCA}, s{sCRD}, v{vCL[0]}')
    for tb in range(8):
        st.emit(Ins(f'ds_read_b128 {CF[0][tb]}, v{vCA} offset:{2048*tb}', lds=f'C0_{tb}'))
    for db in range(2):
        st.emit_all(w_read(WR[db], db, 0, f'W0_{db}'))
    q0 = list(st.q)
    sw = f's{sWOFF}'
    for t in range(4):
        kv_kstep(st, kind, t, first=(t == 0), wsrc=(S_W, sw))
    qs = list(st.q)
    A(f's_mov_b32 s{sIT}, 6')
    A.label(L + '_loop')
    st2 = Stream(A, qs)
    for t in range(4):
        kv_kstep(st2, kind, t, wsrc=(S_W, sw))
    assert st2.q == qs, (st2.q, qs)
    A(f's_sub_u32 s{sIT}, s{sIT}, 1')
    A(f's_cmp_lg_u32 s{sIT}, 0')
    A(f's_cbranch_scc1 {L}_loop')
    st3 = Stream(A, qs)
    kv_kstep(st3, kind, 0, wsrc=(S_W, sw), cdma=False, vm=8)
    A(f's_mov_b32 s{sWOFF}, 0')
    kv_kstep(st3, kind, 1, wsrc=(S_WQ, sw), cdma=False, vm=4)
    kv_kstep(st3, kind, 2, wsrc=(S_WQ, sw), cdma=False, vm=4)
    kv_kstep(st3, kind, 3, wsrc=(S_WQ, sw), cdma=False, nextc=False, nextw=False, vm=4)
    assert not st3.q, st3.q
    if kind == 'K': ST.stamp(A)
    else:
        ST.n -= 1; ST.stamp(A)
    A('s_nop 7')
    tmp = [R('v', 24, 4), R('v', 28, 4)]
    n = 0
    frs = []
    if kind == 'K':
        for sp in range(4):
            for tb in range(8):
                frs.append((kv_tile(tb, 2*sp), kv_tile(tb, 2*sp+1), vST[sp >> 1], (sp & 1)*2048 + (tb & 1)*1024, sT0 + (tb >> 1)))
    else:
        for db in range(8):
            for p2 in range(4):
                frs.append((kv_tile(2*p2, db), kv_tile(2*p2+1, db), vST[db >> 2], (db & 3)*1024, sT0 + p2))
    for (t0, t1, vo, imm, so) in frs:
        dst = t0
        if t0.kind == 'a':
            for k in range(4): A(f'v_accvgpr_read_b32 {tmp[0][k]}, {t0[k]}')
            t0 = tmp[0]; dst = tmp[0]
        if t1.kind == 'a':
            for k in range(4): A(f'v_accvgpr_read_b32 {tmp[1][k]}, {t1[k]}')
            t1 = tmp[1]
        A(f'v_cvt_pk_bf16_f32 {dst[0]}, {t0[0]}, {t0[1]}')
        A(f'v_cvt_pk_bf16_f32 {dst[1]}, {t0[2]}, {t0[3]}')
        A(f'v_cvt_pk_bf16_f32 {dst[2]}, {t1[0]}, {t1[1]}')
        A(f'v_cvt_pk_bf16_f32 {dst[3]}, {t1[2]}, {t1[3]}')
        A(f'buffer_store_dwordx4 {dst}, v{vo}, s[{S_OUT}:{S_OUT+3}], s{so} offen offset:{imm}')
        if dst.base == tmp[0].base and dst.kind == 'v':
            A('s_nop 1')
    A('s_branch k1_q')

def q_phase(A, rdfn=None, dmafn=None, nsteps=14, stores_before=32, xn=None):
    NR = 8
    RING = [R('a', 32 + 4*i, 4) for i in range(NR)]
    LA = 6
    xn = xn or XN
    rdfn = rdfn or w_read
    if dmafn is None:
        dmafn = lambda slot: w_dma(S_WQ, slot, f's{sWOFF}') + [f's_add_u32 s{sWOFF}, s{sWOFF}, 0x40000']
    def tile(db, qb): return R('v', ACCV + (db*2+qb)*4, 4)
    st = Stream(A)
    def rd(k):
        s, db = divmod(k, 16)
        return rdfn(RING[k % NR], db, s % 4, f'Q{k}')
    for k in range(LA):
        st.emit_all(rd(k))
    for s in range(nsteps):
        fill = {g: [] for g in range(-1, 32)}
        mf = []
        for db in range(16):
            k = s*16 + db
            for qb in range(2):
                d = tile(db, qb)
                mf.append(mfma16(d, RING[k % NR], xn[qb][s], '0' if s == 0 else d, (f'Q{k}a', f'Q{k}b') if qb == 0 else ()))
            if k + LA < nsteps*16:
                r = rd(k + LA)
                fill[2*db].append(r[0]); fill[2*db+1].append(r[1])
        vm = None
        if s + 3 < nsteps:
            l = dmafn((s+3) % 4)
            fill[1].append(l[0])
            for j in range(4): fill[4 + 6*j].append(l[1+j])
            fill[28].append(l[5])
        st.emit_all(gapfill(mf, fill))
        if s + 2 < nsteps:
            if s + 3 < nsteps:
                vm = 4 + (stores_before if s == 0 else 0)
            else:
                vm = 0
            A(f's_waitcnt vmcnt({vm})')
        if s + 1 < nsteps:
            A('s_barrier')
    return tile

ST = Stamps(False)
def gen_k1(A, stamps=False):
    global ST
    ST = Stamps(stamps)
    kernel_header(A, 'k1_kernel')
    A('s_cmp_ge_u32 s2, 256'); A('s_cbranch_scc1 k1_end')
    A('s_load_dwordx4 s[36:39], s[0:1], 0')
    A('s_load_dwordx4 s[40:43], s[0:1], 16')
    A('s_load_dwordx2 s[44:45], s[0:1], 32')
    A('s_load_dwordx2 s[46:47], s[0:1], 96')
    A('v_lshrrev_b32 v23, 6, v0')
    A('v_and_b32 v0, 63, v0')
    A(f'v_readfirstlane_b32 s{sW}, v23')
    A('s_and_b32 s60, s2, 7')
    A('s_lshr_b32 s61, s2, 3')
    A('s_and_b32 s62, s61, 7')
    A('s_lshr_b32 s63, s61, 3')
    A(f's_lshr_b32 s{sKIND}, s63, 1')
    A('s_and_b32 s63, s63, 1')
    A('s_lshl_b32 s64, s60, 1')
    A('s_add_u32 s63, s64, s63')
    A('s_lshr_b32 s65, s61, 4')
    A('s_add_u32 s65, s64, s65')
    A('s_and_b32 s66, s61, 15')
    A(f's_lshr_b32 s{sWR}, s{sW}, 1')
    A(f's_and_b32 s{sWC}, s{sW}, 1')
    A('s_waitcnt lgkmcnt(0)')
    ST.stamp(A)
    srd(A, S_X, 's36', 's37', 2048*448*2)
    srd(A, S_C, 's38', 's39', 2048*1024*2)
    A('s_lshl_b32 s67, s65, 9')
    A(f's_add_u32 s{S_WQ}, s40, s67'); A(f's_addc_u32 s{S_WQ+1}, s41, 0')
    A(f's_sub_u32 s{S_WQ+2}, {448*8192}, s67'); A(f's_mov_b32 s{S_WQ+3}, 0x00020000')
    A(f's_cmp_eq_u32 s{sKIND}, 0')
    A('s_cselect_b32 s68, s42, s44'); A('s_cselect_b32 s69, s43, s45')
    A('s_lshl_b32 s67, s63, 9')
    A(f's_add_u32 s{S_W}, s68, s67'); A(f's_addc_u32 s{S_W+1}, s69, 0')
    A(f's_sub_u32 s{S_W+2}, {1024*8192}, s67'); A(f's_mov_b32 s{S_W+3}, 0x00020000')
    A(f's_lshl_b32 s67, s{sKIND}, 24'); A('s_lshl_b32 s68, s63, 20'); A('s_add_u32 s67, s67, s68')
    A(f's_add_u32 s{S_OUT}, s46, s67'); A(f's_addc_u32 s{S_OUT+1}, s47, 0')
    A(f's_mov_b32 s{S_OUT+2}, 0x100000'); A(f's_mov_b32 s{S_OUT+3}, 0x00020000')
    A('s_lshl_b32 s67, s65, 20'); A(f's_add_u32 s67, s67, {WS_Q}')
    A(f's_add_u32 s{S_Q}, s46, s67'); A(f's_addc_u32 s{S_Q+1}, s47, 0')
    A(f's_mov_b32 s{S_Q+2}, 0x100000'); A(f's_mov_b32 s{S_Q+3}, 0x00020000')
    A('v_and_b32 v23, 15, v0'); A('v_lshrrev_b32 v24, 4, v0')
    A(f'v_lshlrev_b32 v{vLANE16}, 4, v0')
    A('s_lshl_b32 s67, s66, 7'); A(f's_lshl_b32 s68, s{sW}, 5'); A('s_add_u32 s67, s67, s68')
    A('v_add_u32 v25, s67, v23')
    A('s_movk_i32 s68, 896')
    A('v_mul_lo_u32 v25, v25, s68')
    A('v_lshl_add_u32 v25, v24, 4, v25')
    A(f'v_add_u32 v26, {16*896}, v25')
    XR = [[R('v', ACCV + (qb*14+s)*4, 4) for s in range(14)] for qb in range(2)]
    for qb in range(2):
        for s in range(14):
            A(f'buffer_load_dwordx4 {XR[qb][s]}, v{25+qb}, s[{S_X}:{S_X+3}], 0 offen offset:{64*s}')
    A('s_lshl_b32 s67, s62, 8'); A(f's_lshl_b32 s68, s{sW}, 6'); A('s_add_u32 s67, s67, s68')
    A('v_lshrrev_b32 v27, 3, v0'); A('v_add_u32 v27, s67, v27'); A('v_lshlrev_b32 v27, 11, v27')
    A('v_and_b32 v28, 7, v0')
    for j in range(4):
        A(f'v_xor_b32 v29, v28, v24' if j % 2 == 0 else f'v_add_u32 v29, 4, v24')
        if j % 2 == 1: A('v_xor_b32 v29, v28, v29')
        A(f'v_lshl_add_u32 v{vDC[j]}, v29, 4, v27')
        if j: A(f'v_add_u32 v{vDC[j]}, {j*(8*2048 - 1024)}, v{vDC[j]}')
    A('v_lshrrev_b32 v27, 5, v0'); A('v_and_b32 v28, 31, v0')
    A(f's_lshl_b32 s67, s{sW}, 3'); A(f's_and_b32 s68, s{sW}, 1'); A('s_lshl_b32 s68, s68, 2')
    for j in range(4):
        A(f'v_add_u32 v29, {2*j}, v27')
        A(f'v_and_b32 v30, 3, v29'); A('v_or_b32 v30, s68, v30'); A('v_lshlrev_b32 v30, 1, v30')
        A('v_xor_b32 v30, v28, v30')
        A('v_add_u32 v29, s67, v29'); A('v_lshlrev_b32 v29, 13, v29')
        A(f'v_lshl_add_u32 v{vDW[j]}, v30, 4, v29')
        if j: A(f'v_subrev_u32 v{vDW[j]}, {1024*j}, v{vDW[j]}')
    A(f's_lshl_b32 s{sWB}, s{sW}, 12'); A(f's_add_u32 s{sWB}, s{sWB}, {WBASE}')
    A(f's_lshl_b32 s{sCB}, s{sW}, 13')
    A(f's_mov_b32 s{sWOFF}, 0')
    def cstage(stage, halves):
        for hf in halves:
            A(f's_mov_b32 s{sTMP+hf}, {128*stage + 65536*hf}')
            A(f's_add_u32 s{sCWR}, s{sCB}, {32768*(stage % 3)}')
            l = c_dma(hf); A(l[0]); A('s_nop 0'); A.extend(l[1:])
    def wstage(t):
        l = w_dma(S_W, t % 4, f's{sWOFF}'); A(l[0]); A('s_nop 0'); A.extend(l[1:])
        A(f's_add_u32 s{sWOFF}, s{sWOFF}, 0x40000')
    cstage(0, (0, 1)); wstage(0); wstage(1); cstage(1, (0, 1)); wstage(2); cstage(2, (0,))
    A(f's_mov_b32 s{sCRD}, 0')
    A(f's_add_u32 s{sCWR}, s{sCB}, {32768*2}')
    A(f's_mov_b32 s{sCOFF}, {128*2}')
    A(f's_mov_b32 s{sTMP}, {128*2}'); A(f's_mov_b32 s{sTMP+1}, {128*2 + 65536}')
    A(f's_lshl_b32 s67, s{sWR}, 14')
    A('v_lshrrev_b32 v27, 1, v23')
    for s in range(2):
        A(f'v_add_u32 v28, {4*s}, v24'); A('v_xor_b32 v28, v28, v27'); A('v_lshlrev_b32 v28, 4, v28')
        A('v_lshl_add_u32 v28, v23, 7, v28'); A(f'v_add_u32 v{vCL[s]}, s67, v28')
    A('v_lshrrev_b32 v27, 2, v23')
    A('v_lshl_add_u32 v28, v24, 3, v27'); A('v_lshlrev_b32 v28, 9, v28')
    A('v_and_b32 v29, 3, v23'); A('v_lshl_add_u32 v28, v29, 3, v28')
    A(f's_lshl_b32 s67, s{sWC}, 8'); A(f's_add_u32 s67, s67, {WBASE}'); A('v_add_u32 v28, s67, v28')
    A('v_and_b32 v29, 1, v24'); A('v_lshl_or_b32 v29, v29, 2, v27'); A('v_lshlrev_b32 v29, 5, v29')
    for db in range(8):
        A(f'v_xor_b32 v30, {db*32}, v29'); A(f'v_add_u32 v{vWA[db]}, v28, v30')
    A('s_lshl_b32 s67, s62, 17'); A(f's_lshl_b32 s68, s{sWR}, 16'); A('s_add_u32 s67, s67, s68')
    A(f's_lshl_b32 s68, s{sWC}, 13'); A('s_add_u32 s67, s67, s68')
    A(f'v_add_u32 v{vST[0]}, s67, v{vLANE16}'); A(f'v_add_u32 v{vST[1]}, 0x1000, v{vST[0]}')
    for k in range(4): A(f's_mov_b32 s{sT0+k}, {16384*k}')
    A('s_waitcnt vmcnt(32)')
    ST.stamp(A)
    A('s_mov_b32 s67, 0x3f803f80')
    for qb in range(2):
        A(f'v_mov_b32 v{23+2*qb}, 0'); A(f'v_mov_b32 v{24+2*qb}, 0')
    for s in range(14):
        for k in range(4):
            for qb in range(2):
                A(f'v_dot2c_f32_bf16 v{23+2*qb}, s67, {XR[qb][s][k]}')
                A(f'v_dot2c_f32_bf16 v{24+2*qb}, {XR[qb][s][k]}, {XR[qb][s][k]}')
    A('s_nop 2')
    for r in range(23, 27):
        A(f'v_mov_b32 v27, v{r}'); A('s_nop 1'); A(f'v_permlane16_swap_b32 v{r}, v27'); A('s_nop 1'); A(f'v_add_f32 v{r}, v{r}, v27')
        A(f'v_mov_b32 v27, v{r}'); A('s_nop 1'); A(f'v_permlane32_swap_b32 v{r}, v27'); A('s_nop 1'); A(f'v_add_f32 v{r}, v{r}, v27')
    A(f's_mov_b32 s67, {fbits(1.0/448)}'); A(f's_mov_b32 s68, {fbits(1e-5)}'); A(f's_mov_b32 s69, {fbits(LOG2E/16)}')
    for qb in range(2):
        m, q = 23+2*qb, 24+2*qb
        A(f'v_mul_f32 v{m}, s67, v{m}')
        A(f'v_mul_f32 v{q}, s67, v{q}')
        A(f'v_fma_f32 v{q}, -v{m}, v{m}, v{q}')
        A(f'v_max_f32 v{q}, 0, v{q}')
        A(f'v_add_f32 v{q}, s68, v{q}')
        A(f'v_rsq_f32 v{q}, v{q}')
        A('s_nop 0')
        A(f'v_mul_f32 v{q}, s69, v{q}')
        A(f'v_mul_f32 v{m}, v{m}, v{q}')
    A('v_sub_f32 v28, 0, v23'); A('v_sub_f32 v30, 0, v25')
    A('s_mov_b32 s67, 0xffff0000')
    for qb in range(2):
        rs = 24 + 2*qb; nb = 28 + 2*qb
        for s in range(14):
            for k0 in (0, 2):
                xs = [XR[qb][s][k0], XR[qb][s][k0+1]]
                ts = [144 + 4*(k0//2), 146 + 4*(k0//2)]
                for x, t in zip(xs, ts):
                    A(f'v_lshlrev_b32 v{t}, 16, {x}')
                    A(f'v_and_b32 v{t+1}, s67, {x}')
                for x, t in zip(xs, ts):
                    A(f'v_pk_fma_f32 v[{t}:{t+1}], v[{t}:{t+1}], v[{rs}:{rs+1}], v[{nb}:{nb+1}] op_sel_hi:[1,0,0]')
                A('s_nop 0')
                for x, t in zip(xs, ts):
                    A(f'v_cvt_pk_bf16_f32 {x}, v{t}, v{t+1}')
                for k, x in enumerate(xs):
                    A(f'v_accvgpr_write_b32 {XN[qb][s][k0+k]}, {x}')
    ST.stamp(A)
    A('s_waitcnt vmcnt(16)')
    A('s_barrier')
    ST.stamp(A)
    A(f's_cmp_eq_u32 s{sKIND}, 0')
    A('s_cbranch_scc0 k1_V')
    kv_path(A, 'K')
    kv_path(A, 'V')
    A.label('k1_q')
    ST.stamp(A)
    for db in range(8):
        A(f's_lshl_b32 s67, s{sWC}, 8')
        break
    for db in range(8):
        A(f'v_subrev_u32 v{vWA[db]}, s67, v{vWA[db]}')
    tile = q_phase(A)
    ST.stamp(A)
    A('s_lshl_b32 s67, s66, 2'); A(f's_add_u32 s67, s67, s{sW}'); A('s_lshl_b32 s67, s67, 14')
    A(f'v_add_u32 v{vST[0]}, s67, v{vLANE16}')
    for k in range(4): A(f's_mov_b32 s{sT0+k}, {4096*k}')
    A('s_nop 7')
    for s in range(8):
        for qb in range(2):
            t0, t1 = tile(2*s, qb), tile(2*s+1, qb)
            A(f'v_cvt_pk_bf16_f32 {t0[0]}, {t0[0]}, {t0[1]}')
            A(f'v_cvt_pk_bf16_f32 {t0[1]}, {t0[2]}, {t0[3]}')
            A(f'v_cvt_pk_bf16_f32 {t0[2]}, {t1[0]}, {t1[1]}')
            A(f'v_cvt_pk_bf16_f32 {t0[3]}, {t1[2]}, {t1[3]}')
            f = 2*s + qb
            A(f'buffer_store_dwordx4 {t0}, v{vST[0]}, s[{S_Q}:{S_Q+3}], s{sT0 + (f >> 2)} offen offset:{(f & 3)*1024}')
    if stamps:
        A('s_waitcnt vmcnt(0)')
        ST.stamp(A)
    ST.dump(A, 's46', 's47', sW, 'k1_dumpend')
    A.label('k1_end')
    A('s_endpgm')

if __name__ == '__main__':
    A = Asm()
    A('; @launch kernel=k1_kernel grid=(256,1,1) block=(256,1,1) lds=163840')
    A('.amdgcn_target "amdgcn-amd-amdhsa--gfx950"')
    import sys
    gen_k1(A, stamps=('stamp' in sys.argv))
    kernel_desc(A, 'k1_kernel')
    open('k1.s', 'w').write(A.text())
    v = check_hazards(A.lines, 'k1')
    print(len(v), 'hazard reports;', len(A.lines), 'lines')
```

```python
from asmlib import *
from k1 import fbits

S_K, S_V, S_Q, S_WO, S_P = 4, 8, 12, 16, 20
sW = 28; sH = 29; sQT = 30; sB0 = 31; sB1 = 32; sWE = 33
sA = 34
sKOFF = 35; sVOFF = 36
sW4K = 37
sNIT = 38; sT = 39; sT2 = 40; sTHR = 41; sNEGINF = 42
sM = 44
sWS = 52
vL16 = 1; vKA = 2; vVA = [3, 4]; vDK = 5; vL = [6, 7]; vMX = [10, 11]; vD = 12
vOA = list(range(13, 21)); vDO = list(range(21, 25)); vST = [25, 26]; vT = [27, 28, 29, 30, 31]
O = lambda db, qb: R('v', 32 + (db*2 + qb)*4, 4)
S = lambda p, kk, qb: R('v', 160 + 16*p + (kk*2 + qb)*4, 4)
P = lambda p, qb: R('v', 192 + 8*p + 4*qb, 4)
NM = lambda qb: R('v', 208 + 4*qb, 4)
Q = lambda s, qb: R('a', (s*2 + qb)*4, 4)
NF = 8; LA = 6
RING = [R('a', 64 + 4*i, 4) for i in range(NF)]
THR = 20.0
ST = Stamps(False)

def frag_read(i, p, tagp):
    dst = RING[i % NF]
    if i < 16:   return Ins(f'ds_read_b128 {dst}, v{vVA[1-p]} offset:{1024*i}', lds=f'{tagp}{i}')
    elif i < 32: return Ins(f'ds_read_b128 {dst}, v{vKA} offset:{1024*(i-16)}', lds=f'{tagp}{i}')
    else:        return Ins(f'ds_read_b128 {dst}, v{vVA[p]} offset:{1024*(i-32)}', lds=f'n{i-32}')

def dma_v():
    return [f's_add_u32 s{sT}, s{sA}, 0x8000', f's_and_b32 s{sT}, s{sT}, 0xc000', f's_add_u32 s{sT}, s{sT}, s{sW4K}', f's_add_u32 m0, s{sT}, 0x10000'] + \
           [Ins(f'buffer_load_dwordx4 v{vDK}, s[{S_V}:{S_V+3}], s{sVOFF} offen offset:{1024*k} lds', vm='V') for k in range(4)]
def dma_k():
    return [f's_add_u32 m0, s{sA}, s{sW4K}'] + \
           [Ins(f'buffer_load_dwordx4 v{vDK}, s[{S_K}:{S_K+3}], s{sKOFF} offen offset:{1024*k} lds', vm='K') for k in range(4)]

def emit_dma(st, l):
    for x in l:
        st.emit(x)
        if isinstance(x, str) and ' m0,' in x: st.emit('s_nop 0')

def maxtree(p):
    r = [S(p, kk, qb)[k] for kk in range(2) for qb in range(2) for k in range(4)]
    l = [f'v_max3_f32 v{vMX[0]}, {r[0]}, {r[1]}, {r[2]}']
    for k in range(6): l.append(f'v_max3_f32 v{vMX[0]}, v{vMX[0]}, {r[3+2*k]}, {r[4+2*k]}')
    l.append(f'v_max_f32 v{vMX[0]}, v{vMX[0]}, {r[15]}')
    l.append(f'v_cmp_lt_f32 vcc, s{sTHR}, v{vMX[0]}')
    return l

def expseq(p):
    seq = []
    order = [(qb, kk, k) for qb in range(2) for kk in range(2) for k in range(4)]
    pend_add = []; pend_cvt = []
    for n, (qb, kk, k) in enumerate(order):
        r = S(p, kk, qb)[k]
        seq.append(f'v_exp_f32 {r}, {r}')
        if pend_add: seq.append(pend_add.pop(0))
        if pend_cvt and n % 2 == 1: seq.append(pend_cvt.pop(0))
        pend_add.append(f'v_add_f32 v{vL[qb]}, v{vL[qb]}, {r}')
        if k % 2 == 1:
            pend_cvt.append(f'v_cvt_pk_bf16_f32 {P(p, qb)[kk*2 + k//2]}, {S(p, kk, qb)[k-1]}, {r}')
    seq.append('s_nop 0')
    seq += pend_add + pend_cvt
    return seq

def pv_mfmas(p, tagp):
    m = []
    for db in range(16):
        for qb in range(2):
            m.append(mfma16(O(db, qb), RING[db % NF], P(1-p, qb), O(db, qb), (f'{tagp}{db}',) if qb == 0 else ()))
    return m
def qk_mfmas(p_out, tagp, base=16, czero=False):
    m = []
    for f in range(16):
        s, kk = divmod(f, 2)
        for qb in range(2):
            d = S(p_out, kk, qb)
            c = ('0' if czero else NM(qb)) if s == 0 else d
            m.append(mfma16(d, RING[(base + f) % NF], Q(s, qb), c, (f'{tagp}{base+f}',) if qb == 0 else ()))
    return m

def book_start(p):
    return [f's_add_u32 s{sT}, s{sA}, 0x4000', f's_and_b32 s{sT}, s{sT}, 0xc000', f'v_add_u32 v{vKA}, s{sT}, v{vL16}',
            f's_add_u32 s{sT}, s{sA}, 0x10000', f'v_add_u32 v{vVA[p]}, s{sT}, v{vL16}']
def book_end():
    return [f's_add_u32 s{sA}, s{sA}, 0x4000', f's_and_b32 s{sA}, s{sA}, 0xc000',
            f's_add_u32 s{sKOFF}, s{sKOFF}, 0x4000', f's_add_u32 s{sVOFF}, s{sVOFF}, 0x4000']

def full_iter(st, p, lab, dv=True, dk=True, mid_label=None, nextv=True):
    A = st.A
    st.q = [('c' + x[1:]) if x.startswith('n') else x for x in st.q]
    pv = pv_mfmas(p, 'c'); qk = qk_mfmas(1-p, 'c')
    fill = {g: [] for g in range(-1, 64)}
    fill[-1] += book_start(p)
    for i in range(32):
        k = i + LA
        if k < 32 or nextv:
            fill[2*i].append(frag_read(k, p, 'c'))
    d = []
    if dv: d += dma_v()
    if dk: d += dma_k()
    gaps = [1, 1, 3, 3, 5, 7, 9, 11, 13, 15, 17, 19, 21] if dv else [1, 3, 5, 7, 9]
    for g, x in zip(gaps, d): fill[g].append(x)
    mt = maxtree(p)
    for k, x in enumerate(mt): fill[10 + 2*k + 1].append(x)
    part1 = gapfill(pv, {g: fill[g] for g in range(-1, 32)})
    st.emit_all(part1)
    A(f's_cbranch_vccnz {lab}_slow')
    A.label(f'{lab}_back')
    if mid_label: A.label(mid_label)
    ex = expseq(p)
    fill2 = {g: list(fill[32 + g]) for g in range(32)}
    n = len(ex); k = 0
    for g in range(32):
        tgt = (n*(g+1) + 31) // 32
        while k < tgt:
            fill2[g].append(ex[k]); k += 1
    fill2[30] += book_end()
    st.emit_all(gapfill(qk, fill2))

def slow_path(A, p, lab):
    A.label(f'{lab}_slow')
    A('s_nop 7')
    rowmax_update(A, p, first=False)
    A(f's_branch {lab}_back')

def xreduce(A, r, op, tmp):
    A(f'v_mov_b32 v{tmp}, v{r}'); A('s_nop 1'); A(f'v_permlane16_swap_b32 v{r}, v{tmp}'); A('s_nop 1'); A(f'{op} v{r}, v{r}, v{tmp}')
    A(f'v_mov_b32 v{tmp}, v{r}'); A('s_nop 1'); A(f'v_permlane32_swap_b32 v{r}, v{tmp}'); A('s_nop 1'); A(f'{op} v{r}, v{r}, v{tmp}')

def rowmax_update(A, p, first):
    for qb in range(2):
        r = [S(p, kk, qb)[k] for kk in range(2) for k in range(4)]
        m = vMX[qb]
        A(f'v_max3_f32 v{m}, {r[0]}, {r[1]}, {r[2]}')
        A(f'v_max3_f32 v{m}, v{m}, {r[3]}, {r[4]}')
        A(f'v_max3_f32 v{m}, v{m}, {r[5]}, {r[6]}')
        A(f'v_max_f32 v{m}, v{m}, {r[7]}')
        xreduce(A, m, 'v_max_f32', vT[0])
        if not first:
            A(f'v_max_f32 v{m}, 0, v{m}')
        for x in r: A(f'v_sub_f32 {x}, {x}, v{m}')
        if first:
            for k in range(4): A(f'v_sub_f32 {NM(qb)[k]}, 0, v{m}')
        else:
            for k in range(4): A(f'v_sub_f32 {NM(qb)[k]}, {NM(qb)[k]}, v{m}')
            A(f'v_exp_f32 v{vT[1]}, -v{m}')
            A('s_nop 0')
            A(f'v_mul_f32 v{vL[qb]}, v{vL[qb]}, v{vT[1]}')
            for db in range(16):
                for k in range(4): A(f'v_mul_f32 {O(db, qb)[k]}, {O(db, qb)[k]}, v{vT[1]}')

def apply_mask(A, p):
    for r in range(4):
        A(f'v_cmp_gt_i32 s[{sM+2*r}:{sM+2*r+1}], {r}, v{vD}')
    A(f'v_mov_b32 v{vT[0]}, s{sNEGINF}')
    for r in range(4):
        for t in (S(p, 0, 0), S(p, 1, 1)):
            A(f'v_cndmask_b32 {t[r]}, {t[r]}, v{vT[0]}, s[{sM+2*r}:{sM+2*r+1}]')
        A(f'v_mov_b32 {S(p, 1, 0)[r]}, s{sNEGINF}')

def pv_only(st, p):
    A = st.A
    st.q = [('c' + x[1:]) if x.startswith('n') else x for x in st.q]
    pv = pv_mfmas(p, 'c')
    fill = {g: [] for g in range(-1, 32)}
    for i in range(16):
        k = i + LA
        if k < 16: fill[2*i].append(frag_read(k, p, 'c'))
    st.emit_all(gapfill(pv, fill))

def oproj(A, first_slabs_issued=False):
    C = lambda s, qb: O(2*s, qb)
    ACC = lambda par, nb, qb: O(2*(par*4 + nb) + 1, qb)
    st = Stream(A)
    def slab_dma(sg):
        slot = sg % 4
        l = []
        for a in range(2):
            l.append(f's_add_u32 m0, s{sT2}, {slot*32768 + 4096*a}')
            l.append(f's_mov_b32 s{sT}, {128*sg + 28672*a}')
            l += [Ins(f'buffer_load_dwordx4 v{vDO[b]}, s[{S_WO}:{S_WO+3}], s{sT} offen offset:{1024*b} lds', vm=f'W{sg}') for b in range(4)]
        return l
    A(f's_lshl_b32 s{sT2}, s{sW}, 13')
    for sg in range(4): st.emit_all(slab_dma(sg))
    NR = 8; LAo = 6
    def rd(k):
        sg, r = divmod(k, 32); nb, s = divmod(r, 8)
        slot = sg % 4
        a = vOA[nb + 4*(slot >> 1)]; off = (slot & 1)*32768 + s*4096
        d = RING[k % NR]
        return [Ins(f'ds_read_b64_tr_b16 {d.sub(0,2)}, v{a} offset:{off}', lds=f'o{k}a'),
                Ins(f'ds_read_b64_tr_b16 {d.sub(2,2)}, v{a} offset:{off + 2048}', lds=f'o{k}b')]
    def stores(sg):
        par = sg & 1; l = []
        l.append(f's_mov_b32 s{sT}, {2048*sg}')
        for half in range(2):
            for qb in range(2):
                t0, t1 = ACC(par, 2*half, qb), ACC(par, 2*half+1, qb)
                l += [f'v_cvt_pk_bf16_f32 {t0[0]}, {t0[0]}, {t0[1]}', f'v_cvt_pk_bf16_f32 {t0[1]}, {t0[2]}, {t0[3]}',
                      f'v_cvt_pk_bf16_f32 {t0[2]}, {t1[0]}, {t1[1]}', f'v_cvt_pk_bf16_f32 {t0[3]}, {t1[2]}, {t1[3]}',
                      Ins(f'buffer_store_dwordx4 {t0}, v{vST[qb]}, s[{S_P}:{S_P+3}], s{sT} offen offset:{1024*half}', vm='st')]
        return l
    st.wait_vm('W0'); A('s_barrier')
    for k in range(LAo): st.emit_all(rd(k))
    for sg in range(7):
        par = sg & 1
        mf = []; fill = {g: [] for g in range(-1, 64)}
        for r in range(32):
            nb, s = divmod(r, 8); k = sg*32 + r
            for qb in range(2):
                d = ACC(par, nb, qb)
                mf.append(mfma16(d, RING[k % NR], C(s, qb), '0' if s == 0 else d, (f'o{k}a', f'o{k}b') if qb == 0 else ()))
            if k + LAo < 7*32 and (r + LAo < 32):
                x = rd(k + LAo); fill[2*r].append(x[0]); fill[2*r+1].append(x[1])
        if sg > 0:
            sl = stores(sg - 1)
            for n, x in enumerate(sl): fill[4 + 2*n].append(x)
        st.emit_all(gapfill(mf, fill))
        if sg + 1 < 7:
            st.wait_vm(f'W{sg+1}'); A('s_barrier')
            if sg + 4 < 7: st.emit_all(slab_dma(sg + 4))
            for r in range(LAo): st.emit_all(rd((sg+1)*32 + r))
    A('s_nop 7')
    st.emit_all(stores(6))

def gen_k2(A, stamps=False):
    global ST
    ST = Stamps(stamps)
    kernel_header(A, 'k2_kernel')
    A('s_cmp_ge_u32 s2, 256'); A('s_cbranch_scc1 k2_end')
    A('s_load_dwordx2 s[54:55], s[0:1], 40')
    A(f's_load_dwordx2 s[{sWS}:{sWS+1}], s[0:1], 96')
    A('v_lshrrev_b32 v27, 6, v0'); A('v_and_b32 v0, 63, v0'); A(f'v_readfirstlane_b32 s{sW}, v27')
    A('s_and_b32 s60, s2, 7'); A('s_lshr_b32 s61, s2, 3')
    A('s_lshr_b32 s62, s61, 4'); A('s_lshl_b32 s60, s60, 1'); A(f's_add_u32 s{sH}, s60, s62')
    A('s_and_b32 s61, s61, 15'); A(f's_sub_u32 s{sQT}, 15, s61')
    A(f's_mov_b32 s{sB0}, 0'); A(f's_lshl_b32 s{sB1}, s{sQT}, 2'); A(f's_add_u32 s{sB1}, s{sB1}, 4')
    A(f's_mov_b32 s{sWE}, s{sW}')
    A('s_waitcnt lgkmcnt(0)')
    ST.stamp(A)
    A(f's_lshl_b32 s60, s{sH}, 20')
    for sr_, base in ((S_K, WS_K), (S_V, WS_V), (S_Q, WS_Q)):
        A(f's_add_u32 s61, s60, {base}')
        A(f's_add_u32 s{sr_}, s{sWS}, s61'); A(f's_addc_u32 s{sr_+1}, s{sWS+1}, 0')
        A(f's_mov_b32 s{sr_+2}, 0x100000'); A(f's_mov_b32 s{sr_+3}, 0x00020000')
    A(f's_mul_i32 s61, s{sH}, {256*448*2}')
    A(f's_add_u32 s{S_WO}, s54, s61'); A(f's_addc_u32 s{S_WO+1}, s55, 0')
    A(f's_mov_b32 s{S_WO+2}, {256*448*2}'); A(f's_mov_b32 s{S_WO+3}, 0x00020000')
    A(f's_mul_i32 s61, s{sH}, {128*14336}'); A(f's_add_u32 s61, s61, {WS_PART}')
    A(f's_add_u32 s{S_P}, s{sWS}, s61'); A(f's_addc_u32 s{S_P+1}, s{sWS+1}, 0')
    A(f's_mov_b32 s{S_P+2}, {128*14336}'); A(f's_mov_b32 s{S_P+3}, 0x00020000')
    A(f's_lshl_b32 s{sW4K}, s{sW}, 12')
    A(f's_mov_b32 s{sTHR}, {fbits(THR)}'); A(f's_mov_b32 s{sNEGINF}, 0xff800000')
    A(f'v_lshlrev_b32 v{vL16}, 4, v0')
    A(f'v_add_u32 v{vDK}, s{sW4K}, v{vL16}')
    A(f's_lshl_b32 s60, s{sQT}, 2'); A(f's_add_u32 s60, s60, s{sW}'); A('s_lshl_b32 s60, s60, 14')
    A(f'v_add_u32 v27, s60, v{vL16}')
    st = Stream(A)
    for f in range(16):
        if f % 4 == 0: A(f's_mov_b32 s61, {4096*(f//4)}')
        st.emit(Ins(f'buffer_load_dwordx4 {Q(f//2, f%2)}, v27, s[{S_Q}:{S_Q+3}], s61 offen offset:{1024*(f%4)}', vm='Q'))
    def pk(srd_, ring, d, tag):
        A(f's_add_u32 s60, s{sB0}, {d}'); A('s_lshl_b32 s61, s60, 14')
        A('s_and_b32 s62, s61, 0xc000'); A(f's_add_u32 s62, s62, s{sW4K}'); A(f's_add_u32 m0, s62, {ring}')
        A('s_nop 0')
        for k in range(4):
            st.emit(Ins(f'buffer_load_dwordx4 v{vDK}, s[{srd_}:{srd_+3}], s61 offen offset:{1024*k} lds', vm=tag))
    pk(S_K, 0, 0, 'K0'); pk(S_K, 0, 1, 'K1'); pk(S_V, 0x10000, 0, 'V0'); pk(S_K, 0, 2, 'K2'); pk(S_V, 0x10000, 1, 'V1'); pk(S_K, 0, 3, 'K3')
    A('v_and_b32 v28, 15, v0'); A('v_lshrrev_b32 v29, 4, v0')
    A(f'v_lshlrev_b32 v30, 2, v29'); A(f'v_sub_u32 v{vD}, v28, v30')
    A('v_lshrrev_b32 v31, 2, v28'); A('v_add_u32 v30, v30, v31')
    A('v_lshrrev_b32 v31, 1, v30'); A('v_and_b32 v31, 3, v31'); A('v_lshlrev_b32 v31, 5, v31')
    A('v_lshlrev_b32 v30, 7, v30'); A('v_and_b32 v28, 3, v28'); A('v_lshl_add_u32 v30, v28, 3, v30')
    for nb in range(4):
        A(f'v_xor_b32 v28, {nb << 5}, v31'); A(f'v_add_u32 v{vOA[nb]}, v30, v28'); A(f'v_add_u32 v{vOA[4+nb]}, 0x10000, v{vOA[nb]}')
    A('v_lshrrev_b32 v28, 3, v0'); A(f's_lshl_b32 s60, s{sW}, 6'); A('v_add_u32 v28, s60, v28')
    A('s_movk_i32 s60, 896'); A('v_mul_lo_u32 v28, v28, s60')
    A('v_lshrrev_b32 v29, 4, v0'); A('v_lshlrev_b32 v29, 1, v29'); A('v_and_b32 v30, 7, v0'); A('v_xor_b32 v29, v29, v30')
    A('v_lshl_add_u32 v28, v29, 4, v28')
    for b in range(4): A(f'v_add_u32 v{vDO[b]}, {6144*b}, v28')
    A(f's_lshl_b32 s60, s{sQT}, 3'); A(f's_lshl_b32 s61, s{sW}, 1'); A('s_add_u32 s60, s60, s61'); A('s_mul_i32 s60, s60, 14336')
    A(f'v_add_u32 v{vST[0]}, s60, v{vL16}'); A(f'v_add_u32 v{vST[1]}, 14336, v{vST[0]}')
    for db in range(16):
        for qb in range(2):
            for k in range(4): A(f'v_mov_b32 {O(db, qb)[k]}, 0')
    A(f'v_mov_b32 v{vL[0]}, 0'); A(f'v_mov_b32 v{vL[1]}, 0')
    A(f's_lshl_b32 s{sA}, s{sB0}, 14'); A(f's_and_b32 s{sA}, s{sA}, 0xc000')
    A(f's_add_u32 s{sKOFF}, s{sB0}, 4'); A(f's_lshl_b32 s{sKOFF}, s{sKOFF}, 14')
    A(f's_add_u32 s{sVOFF}, s{sB0}, 2'); A(f's_lshl_b32 s{sVOFF}, s{sVOFF}, 14')
    A(f's_sub_u32 s{sNIT}, s{sB1}, s{sB0}'); A(f's_sub_u32 s{sNIT}, s{sNIT}, 4'); A(f's_lshr_b32 s{sNIT}, s{sNIT}, 1')
    st.wait_vm('K0'); A('s_barrier')
    ST.stamp(A)
    A(f'v_add_u32 v{vKA}, s{sA}, v{vL16}')
    rd = lambda f: Ins(f'ds_read_b128 {RING[f % NF]}, v{vKA} offset:{1024*f}', lds=f'f{f}')
    for f in range(LA): st.emit(rd(f))
    mf = qk_mfmas(0, 'f', base=0, czero=True)
    fill = {g: [] for g in range(-1, 32)}
    for f in range(16):
        if f + LA < 16: fill[2*f].append(rd(f + LA))
    st.emit_all(gapfill(mf, fill))
    st.wait_vm('V0'); A('s_barrier')
    A(f's_cmp_eq_u32 s{sNIT}, 0'); A('s_cbranch_scc0 k2_nomask0')
    A(f's_cmp_eq_u32 s{sWE}, 0'); A('s_cbranch_scc0 k2_nomask0')
    A('s_nop 4')
    apply_mask(A, 0)
    A.label('k2_nomask0')
    A('s_nop 4')
    rowmax_update(A, 0, first=True)
    for x in book_start(0): A(x)
    emit_dma(st, dma_v())
    A(f's_cmp_eq_u32 s{sNIT}, 0'); A('s_cbranch_scc1 k2_tail_entry')
    emit_dma(st, dma_k())
    stm = Stream(A)
    for k in range(16, 16 + LA): stm.emit(frag_read(k, 0, 'c'))
    q_mid = list(stm.q)
    A('s_branch k2_mid')
    A.label('k2_tail_entry')
    stm2 = Stream(A)
    for k in range(16, 16 + LA): stm2.emit(frag_read(k, 0, 'c'))
    A('s_branch k2_tmid')
    qhead = [f'n{k}' for k in range(LA)]
    A.label('k2_loop')
    s0 = Stream(A, qhead)
    full_iter(s0, 0, 'k2_m0', mid_label='k2_mid')
    A('s_waitcnt vmcnt(12)'); A('s_barrier')
    full_iter(s0, 1, 'k2_m1')
    assert s0.q == qhead, s0.q
    A('s_waitcnt vmcnt(12)'); A('s_barrier')
    A(f's_sub_u32 s{sNIT}, s{sNIT}, 1'); A(f's_cmp_lg_u32 s{sNIT}, 0'); A('s_cbranch_scc1 k2_loop')
    ST.stamp(A)
    slow = [(0, 'k2_m0'), (1, 'k2_m1')]
    for tau in range(4):
        p = tau & 1
        lab = f'k2_t{tau}'
        A.label(lab)
        dv = tau < 2
        vm = [8, 4, 0, 0][tau]
        if tau > 0:
            A(f's_cmp_ge_u32 s{sWE}, {tau}'); A(f's_cbranch_scc0 {lab}_part')
        A(f's_cmp_eq_u32 s{sWE}, {tau}'); A(f's_cbranch_scc0 {lab}_nomask')
        A('s_nop 7')
        apply_mask(A, p)
        A.label(f'{lab}_nomask')
        s1 = Stream(A, qhead)
        full_iter(s1, p, lab, dv=dv, dk=False, mid_label=('k2_tmid' if tau == 0 else None))
        slow.append((p, lab))
        assert s1.q == qhead
        if tau > 0:
            A(f's_branch {lab}_done')
            A.label(f'{lab}_part')
            if dv:
                emit_dma(Stream(A), dma_v())
            A(f's_cmp_eq_u32 s{sWE}, {tau-1}'); A(f's_cbranch_scc0 {lab}_none')
            s2 = Stream(A, qhead)
            pv_only(s2, p)
            A.label(f'{lab}_none')
            for x in book_end(): A(x)
            A.label(f'{lab}_done')
        A(f's_waitcnt vmcnt({vm})'); A('s_barrier')
    A(f's_cmp_ge_u32 s{sWE}, 3'); A('s_cbranch_scc0 k2_fin')
    s3 = Stream(A, qhead)
    pv_only(s3, 0)
    A.label('k2_fin')
    A('s_waitcnt lgkmcnt(0)')
    A('s_barrier')
    ST.stamp(A)
    A('s_nop 7')
    for qb in range(2):
        xreduce(A, vL[qb], 'v_add_f32', vT[0])
        A(f'v_rcp_f32 v{vL[qb]}, v{vL[qb]}')
    A('s_nop 0')
    for s in range(8):
        for qb in range(2):
            t0, t1 = O(2*s, qb), O(2*s+1, qb)
            for t in (t0, t1):
                for k in range(4): A(f'v_mul_f32 {t[k]}, {t[k]}, v{vL[qb]}')
            A(f'v_cvt_pk_bf16_f32 {t0[0]}, {t0[0]}, {t0[1]}'); A(f'v_cvt_pk_bf16_f32 {t0[1]}, {t0[2]}, {t0[3]}')
            A(f'v_cvt_pk_bf16_f32 {t0[2]}, {t1[0]}, {t1[1]}'); A(f'v_cvt_pk_bf16_f32 {t0[3]}, {t1[2]}, {t1[3]}')
    ST.stamp(A)
    oproj(A)
    ST.stamp(A)
    if stamps:
        A('s_waitcnt vmcnt(0)'); ST.stamp(A)
    ST.dump(A, f's{sWS}', f's{sWS+1}', sW, 'k2_dumpend')
    A('s_branch k2_end')
    for p, lab in slow: slow_path(A, p, lab)
    A.label('k2_end')
    A('s_endpgm')

if __name__ == '__main__':
    import sys
    A = Asm()
    A('; @launch kernel=k2_kernel grid=(256,1,1) block=(256,1,1) lds=131072')
    A('.amdgcn_target "amdgcn-amd-amdhsa--gfx950"')
    gen_k2(A, stamps=('stamp' in sys.argv))
    kernel_desc(A, 'k2_kernel')
    open('k2.s', 'w').write(A.text())
    v = check_hazards(A.lines, 'k2')
    print(len(v), 'hazard reports;', len(A.lines), 'lines')
```

```python
import sys
from asmlib import *
import k1, k2
NAME = 'sequential_preLN__compressed_kv_cla__geglu_ffn__prompt'
def build(kernels, stamp=None, out='all.s', official=False):
    A = Asm()
    if official:
        for l in open('cdna_kernels/' + NAME + '.s.ref').read().split('\n'):
            if l.startswith(';') and '@launch' not in l and 'Override launch' not in l and 'grid=ceil' not in l: A(l)
    spec = {'k1': (256, 256, 163840), 'k2': (256, 256, 131072), 'k3': (256, 448, 0), 'k4': (224, 256, 65536), 'k5': (224, 256, 0)}
    mods = {}
    for k in kernels:
        mods[k] = __import__(k)
        if hasattr(mods[k], 'LAUNCH'): spec[k] = mods[k].LAUNCH
        g, b, l = spec[k]
        A(f'; @launch kernel={k}_kernel grid=({g},1,1) block=({b},1,1) lds={l}')
    A('.amdgcn_target "amdgcn-amd-amdhsa--gfx950"')
    for k in kernels:
        n0 = len(A.lines)
        getattr(mods[k], 'gen_' + k)(A, stamps=(stamp == k))
        v = check_hazards(A.lines[n0:], k)
        print(k, len(v), 'hazard reports;', len(A.lines) - n0, 'lines')
    for k in kernels:
        kernel_desc(A, k + '_kernel', *getattr(mods[k], 'REGS', (512, 256, 102)))
    open(out, 'w').write(A.text())
    print(out, len(A.text()), 'bytes')
if __name__ == '__main__':
    ks = sys.argv[1].split(',')
    import os, json
    if os.environ.get('K1OPT'): k1.set_opt(**json.loads(os.environ['K1OPT']))
    stamp = sys.argv[2] if len(sys.argv) > 2 and sys.argv[2] != '-' else None
    out = sys.argv[3] if len(sys.argv) > 3 else 'all.s'
    if out == 'official':
        build(ks, None, 'cdna_kernels/' + NAME + '.s', official=True)
    else:
        build(ks, stamp, out)
```

```python
import re

class Asm:
    def __init__(self):
        self.lines = []
    def __call__(self, s):
        for l in s.split('\n'):
            l = l.rstrip()
            if l.strip():
                self.lines.append(l)
    def label(self, name):
        self.lines.append(name + ':')
    def extend(self, lst):
        for l in lst:
            self(l)
    def text(self):
        out = []
        for l in self.lines:
            s = l.strip()
            if s.endswith(':') or s.startswith('.') or s.startswith(';'):
                out.append(s)
            else:
                out.append('  ' + s)
        return '\n'.join(out) + '\n'

def vr(base, n=1):
    return f'v{base}' if n == 1 else f'v[{base}:{base+n-1}]'
def ar(base, n=1):
    return f'a{base}' if n == 1 else f'a[{base}:{base+n-1}]'
def sr(base, n=1):
    return f's{base}' if n == 1 else f's[{base}:{base+n-1}]'

class R:
    def __init__(self, kind, base, n=1):
        self.kind, self.base, self.n = kind, base, n
    def __str__(self):
        if self.n == 1:
            return f'{self.kind}{self.base}'
        return f'{self.kind}[{self.base}:{self.base+self.n-1}]'
    def sub(self, off, n=1):
        assert off + n <= self.n, (off, n, self.n)
        return R(self.kind, self.base + off, n)
    def __getitem__(self, i):
        return self.sub(i, 1)

def interleave(main, fillers, start=0, per_gap=None):
    n = len(main) - start
    out = []
    k = 0
    nf = len(fillers)
    for i, m in enumerate(main):
        out.append(m)
        if i >= start:
            j = i - start + 1
            tgt = (nf * j + n - 1) // n if per_gap is None else min(nf, per_gap * j)
            while k < tgt:
                f = fillers[k]
                if isinstance(f, (list, tuple)):
                    out.extend(f)
                else:
                    out.append(f)
                k += 1
    while k < nf:
        f = fillers[k]
        if isinstance(f, (list, tuple)):
            out.extend(f)
        else:
            out.append(f)
        k += 1
    return out

def place(main, slots):
    out = []
    out.extend(slots.get(-1, []))
    for i, m in enumerate(main):
        out.append(m)
        out.extend(slots.get(i, []))
    return out

_reg_re = re.compile(r'\b([vas])\[(\d+):(\d+)\]|\b([vas])(\d+)\b|\b(vcc|exec|m0|scc)\b')

def regs_of(tok):
    out = []
    for m in _reg_re.finditer(tok):
        if m.group(1):
            out += [(m.group(1), i) for i in range(int(m.group(2)), int(m.group(3)) + 1)]
        elif m.group(4):
            out.append((m.group(4), int(m.group(5))))
        else:
            out.append((m.group(6), 0))
    return out

TRANS = ('v_exp_f32', 'v_log_f32', 'v_rcp_f32', 'v_rsq_f32', 'v_sqrt_f32', 'v_sin_f32', 'v_cos_f32')

def parse(line):
    s = line.split(';')[0].strip()
    if not s or s.endswith(':') or s.startswith('.'):
        return None
    parts = s.split(None, 1)
    op = parts[0]
    ops = [x.strip() for x in parts[1].split(',')] if len(parts) > 1 else []
    d = dict(op=op, text=s, ops=ops)
    base = re.sub(r'_e(32|64)$', '', op)
    d['base'] = base
    if op.startswith('v_mfma'):
        d['cls'] = 'mfma'
        d['passes'] = 8 if '32x32x16' in op else (4 if '16x16x32' in op else 16)
        d['dst'] = regs_of(ops[0]); d['a'] = regs_of(ops[1]); d['b'] = regs_of(ops[2]); d['c'] = regs_of(ops[3])
        d['src'] = d['a'] + d['b'] + d['c']
    elif op.startswith('v_'):
        d['cls'] = 'valu'
        d['trans'] = base in TRANS
        if base.startswith('v_cmp'):
            d['dst'] = regs_of(ops[0]); d['src'] = sum([regs_of(o) for o in ops[1:]], [])
        elif base in ('v_permlane32_swap_b32', 'v_permlane16_swap_b32', 'v_swap_b32'):
            d['dst'] = regs_of(ops[0]) + regs_of(ops[1]); d['src'] = list(d['dst'])
        elif base in ('v_add_co_u32', 'v_addc_co_u32', 'v_sub_co_u32'):
            d['dst'] = regs_of(ops[0]) + regs_of(ops[1]); d['src'] = sum([regs_of(o) for o in ops[2:]], [])
        else:
            d['dst'] = regs_of(ops[0]); d['src'] = sum([regs_of(o) for o in ops[1:]], [])
            if base.startswith('v_fmac') or base.startswith('v_dot2c') or base in ('v_pk_fmac_f16',):
                d['src'] += d['dst']
            if base == 'v_cndmask_b32' and len(ops) == 3:
                d['src'].append(('vcc', 0))
            if base == 'v_writelane_b32':
                d['src'] += d['dst']
    elif op.startswith('ds_'):
        d['cls'] = 'ds'
        if op.startswith('ds_read') or op.startswith('ds_bpermute') or op.startswith('ds_swizzle') or op.startswith('ds_permute'):
            d['dst'] = regs_of(ops[0]); d['src'] = sum([regs_of(o) for o in ops[1:]], [])
        else:
            d['dst'] = []; d['src'] = sum([regs_of(o) for o in ops], [])
    elif op.startswith('buffer_') or op.startswith('global_'):
        d['cls'] = 'vmem'
        islds = ' lds' in s
        d['lds'] = islds
        if 'load' in op and not islds:
            d['dst'] = regs_of(ops[0]); d['src'] = sum([regs_of(o) for o in ops[1:]], [])
        elif 'atomic' in op and (' sc0' in s):
            d['dst'] = regs_of(ops[0]) if op.startswith('buffer_') else regs_of(ops[0])
            d['src'] = sum([regs_of(o) for o in ops], [])
        else:
            d['dst'] = []; d['src'] = sum([regs_of(o) for o in ops], [])
        d['store'] = 'store' in op
        d['wide'] = ('x4' in op or 'x3' in op)
        if d['store']:
            d['data'] = regs_of(ops[0]) if op.startswith('buffer_') else regs_of(ops[1])
    elif op.startswith('s_'):
        d['cls'] = 'salu'
        if op in ('s_nop', 's_waitcnt', 's_barrier', 's_endpgm', 's_setprio', 's_sleep') or op.startswith('s_cbranch') or op == 's_branch':
            d['dst'] = []; d['src'] = []
        elif op.startswith('s_cmp') or op.startswith('s_bitcmp'):
            d['dst'] = []; d['src'] = sum([regs_of(o) for o in ops], [])
        else:
            d['dst'] = regs_of(ops[0]) if ops else []
            d['src'] = sum([regs_of(o) for o in ops[1:]], [])
            if 'saveexec' in op:
                d['dst'] = d['dst'] + [('exec', 0)]
    else:
        raise ValueError('cannot parse ' + line)
    return d

def check_hazards(lines, name='', verbose=True):
    ins = [p for p in (parse(l) for l in lines) if p is not None]
    viol = []
    n = len(ins)
    ws = []
    acc = 0
    for d in ins:
        ws.append(acc)
        if d['op'] == 's_nop':
            acc += int(d['ops'][0], 0) + 1
        else:
            acc += 1
    def dist(i, j):
        return ws[j] - ws[i] - 1
    lastw = {}
    lastCread = {}
    laststore = {}
    def V(i, j, need, why):
        if dist(i, j) < need:
            viol.append(f'{name}: need {need} got {dist(i,j)}: {why}\n    [{i}] {ins[i]["text"]}\n    [{j}] {ins[j]["text"]}')
    for j, d in enumerate(ins):
        cls = d['cls']
        src = d.get('src', []); dst = d.get('dst', [])
        for r in set(src):
            if r not in lastw: continue
            i = lastw[r]; p = ins[i]
            if p['cls'] == 'mfma':
                P = p['passes']
                if cls == 'mfma':
                    if r in d['c'] and r not in d['a'] and r not in d['b']:
                        if p['dst'] == d['c'] and p['passes'] == d['passes']:
                            if P == 2: V(i, j, 2, 'mfma D->C')
                        else:
                            V(i, j, {2:4,4:6,8:10,16:18}[P], 'mfma D->C partial overlap')
                    else:
                        V(i, j, {2:5,4:8,8:12,16:20}[P], 'mfma D->A/B')
                elif cls in ('valu', 'vmem', 'ds'):
                    V(i, j, {2:5,4:8,8:12,16:20}[P], 'mfma D->VALU/mem read')
            elif p['cls'] == 'valu':
                if cls == 'mfma' and r[0] in 'va':
                    V(i, j, 2, 'VALU->MFMA')
                if r[0] in ('s', 'vcc'):
                    if cls == 'vmem': V(i, j, 5, 'VALU sgpr->VMEM')
                    elif cls == 'valu':
                        if d['base'] in ('v_readlane_b32', 'v_writelane_b32') :
                            V(i, j, 4, 'VALU sgpr->lane select')
                        else:
                            V(i, j, 2, 'VALU sgpr/vcc->VALU const')
                if r[0] == 'exec' and cls == 'valu' and ('dpp' in d['text'] or 'row_' in d['text']):
                    V(i, j, 5, 'exec->dpp')
                if r[0] in 'va' and cls == 'valu':
                    if p.get('trans') and not d.get('trans'):
                        V(i, j, 1, 'trans->VALU')
                    if d['base'] in ('v_readlane_b32', 'v_readfirstlane_b32'):
                        V(i, j, 1, 'VALU->readlane')
                    if d['base'].startswith('v_permlane'):
                        V(i, j, 2, 'VALU->permlane')
                    if 'row_' in d['text'] or 'quad_perm' in d['text'] or ' dpp' in d['text']:
                        V(i, j, 2, 'VALU->DPP')
                    if ('op_sel' in p['text'] or 'sdwa' in p['text']):
                        V(i, j, 1, 'opsel->VALU')
            elif p['cls'] == 'salu':
                if r[0] == 'm0' and cls == 'vmem' and d.get('lds'):
                    V(i, j, 1, 'm0->lds dma')
        if cls == 'vmem' and d.get('lds') and ('m0', 0) in lastw:
            i = lastw[('m0', 0)]
            if ins[i]['cls'] == 'salu': V(i, j, 1, 'm0->lds dma')
        if cls == 'mfma' and ('exec', 0) in lastw:
            i = lastw[('exec', 0)]
            if ins[i]['cls'] == 'valu': V(i, j, 4, 'valu exec->mfma')
        for r in set(dst):
            if r in lastw:
                i = lastw[r]; p = ins[i]
                if p['cls'] == 'mfma':
                    P = p['passes']
                    if cls in ('valu', 'vmem', 'ds'):
                        V(i, j, {2:5,4:8,8:12,16:20}[P], 'mfma D->VALU/load write (WAW)')
                    elif cls == 'mfma' and not (r in d['c']):
                        V(i, j, {2:4,4:6,8:10,16:18}[P], 'mfma D->mfma D (WAW, no chain)')
            if r in lastCread and cls == 'valu':
                i = lastCread[r]
                V(i, j, {2:1,4:3,8:7,16:15}[ins[i]['passes']], 'mfma C read -> VALU write (WAR)')
            if r in laststore and cls in ('valu', 'mfma', 'ds', 'vmem'):
                i = laststore[r]
                V(i, j, 2 if cls == 'valu' else 1, 'wide store data WAR')
        for r in dst:
            lastw[r] = j
        if cls == 'mfma':
            for r in d['c']:
                lastCread[r] = j
        if cls == 'vmem' and d.get('store') and d.get('wide'):
            for r in d['data']:
                laststore[r] = j
    if verbose:
        for v in viol[:8]: print(v)
    return viol

class Ins:
    __slots__ = ('t', 'lds', 'need', 'vm', 'vneed')
    def __init__(self, t, lds=None, need=(), vm=None, vneed=()):
        self.t = t; self.lds = lds; self.need = tuple(need); self.vm = vm; self.vneed = tuple(vneed)

class Stream:
    def __init__(self, A, q=None, vq=None):
        self.A = A
        self.q = list(q or [])
        self.vq = list(vq or [])
    def wait_vm(self, *tags):
        idx = -1
        for k, x in enumerate(self.vq):
            if x in tags: idx = k
        if idx >= 0:
            n = len(self.vq) - 1 - idx
            assert n <= 63
            self.A(f's_waitcnt vmcnt({n})')
            self.vq = self.vq[idx + 1:]
    def emit(self, ins):
        if isinstance(ins, str):
            ins = Ins(ins)
        if ins.need:
            idx = -1
            for t in ins.need:
                for k, x in enumerate(self.q):
                    if x == t and k > idx:
                        idx = k
            if idx >= 0:
                n = len(self.q) - 1 - idx
                assert n <= 15, ('lgkmcnt overflow', n)
                self.A(f's_waitcnt lgkmcnt({n})')
                self.q = self.q[idx + 1:]
        self.A(ins.t)
        if ins.lds is not None:
            self.q.append(ins.lds)
        if ins.vm is not None:
            self.vq.append(ins.vm)
            assert len(self.vq) <= 63, 'vmcnt overflow'
    def emit_all(self, lst):
        for x in lst:
            self.emit(x)
    def drain(self):
        if self.q:
            self.A('s_waitcnt lgkmcnt(0)')
        self.q = []

def gapfill(mfmas, fillers):
    out = list(fillers.get(-1, []))
    for i, m in enumerate(mfmas):
        out.append(m)
        out.extend(fillers.get(i, []))
    return out

def kernel_header(A, name):
    A('.text'); A(f'.globl {name}'); A('.p2align 8'); A(f'.type {name},@function'); A.label(name)

def kernel_desc(A, name, nvgpr=512, accum=256, nsgpr=102):
    A('.section .rodata,"a"'); A('.p2align 6'); A(f'.amdhsa_kernel {name}')
    A(f'.amdhsa_next_free_vgpr {nvgpr}'); A(f'.amdhsa_next_free_sgpr {nsgpr}'); A(f'.amdhsa_accum_offset {accum}')
    A('.amdhsa_group_segment_fixed_size 0'); A('.amdhsa_kernarg_size 104'); A('.amdhsa_user_sgpr_count 2')
    A('.amdhsa_user_sgpr_kernarg_segment_ptr 1'); A('.amdhsa_system_sgpr_workgroup_id_x 1'); A('.end_amdhsa_kernel')

def mfma16(d, a, b, c, need=()):
    return Ins(f'v_mfma_f32_16x16x32_bf16 {d}, {a}, {b}, {c}', need=need)

def srd(A, s, ptr_lo, ptr_hi, size, add=0):
    if add:
        A(f's_add_u32 s{s}, {ptr_lo}, {add}')
        A(f's_addc_u32 s{s+1}, {ptr_hi}, 0')
    else:
        A(f's_mov_b32 s{s}, {ptr_lo}')
        A(f's_mov_b32 s{s+1}, {ptr_hi}')
    A(f's_mov_b32 s{s+2}, {size}')
    A(f's_mov_b32 s{s+3}, 0x00020000')

WS_K    = 0
WS_V    = 16 << 20
WS_Q    = 32 << 20
WS_PART = 48 << 20
WS_BO   = 80 << 20
WS_ST   = 96 << 20
WS_FLAG = 97 << 20
WS_H    = 100 << 20
WS_HN   = 104 << 20
WS_HID  = 108 << 20
WS_XN   = 116 << 20


class Stamps:
    def __init__(self, enabled, base=72):
        self.on = enabled; self.base = base; self.n = 0
    def stamp(self, A):
        if not self.on: return
        b = self.base; c = b + 4 + 2*self.n
        assert c + 1 < 102
        A(f's_memrealtime s[{b}:{b+1}]'); A(f's_memtime s[{b+2}:{b+3}]'); A('s_waitcnt lgkmcnt(0)')
        A(f's_mov_b32 s{c}, s{b}'); A(f's_mov_b32 s{c+1}, s{b+2}')
        self.n += 1
    def dump(self, A, ws_lo, ws_hi, wave_sgpr, label):
        if not self.on: return
        A(f's_cmp_lg_u32 s{wave_sgpr}, 0'); A(f's_cbranch_scc1 {label}')
        A(f's_add_u32 s4, {ws_lo}, 0xC000000'); A(f's_addc_u32 s5, {ws_hi}, 0')
        A('s_mov_b32 s6, 0x100000'); A('s_mov_b32 s7, 0x00020000')
        A('s_lshl_b32 s8, s2, 7'); A('v_mov_b32 v2, s8')
        A('s_mov_b64 exec, 1')
        for i in range(self.n):
            b = self.base + 4 + 2*i
            A(f'v_mov_b32 v4, s{b}'); A(f'v_mov_b32 v5, s{b+1}')
            A(f'buffer_store_dwordx2 v[4:5], v2, s[4:7], 0 offen offset:{8*i}')
            A('s_nop 1')
        A.label(label)


def lane_stamp(A, vreg, slot_sgpr):
    A('s_memtime s[96:97]'); A('s_memrealtime s[98:99]'); A('s_waitcnt lgkmcnt(0)')
    A(f's_mov_b32 m0, s{slot_sgpr}'); A('s_nop 3')
    A(f'v_writelane_b32 v{vreg}, s96, m0')
    A(f's_add_u32 m0, s{slot_sgpr}, 32'); A('s_nop 3')
    A(f'v_writelane_b32 v{vreg}, s98, m0')
    A(f's_add_u32 s{slot_sgpr}, s{slot_sgpr}, 1')
def lane_dump(A, vreg, ws_lo, ws_hi, wave_sgpr, label):
    A(f's_cmp_lg_u32 s{wave_sgpr}, 0'); A(f's_cbranch_scc1 {label}')
    A(f's_add_u32 s4, {ws_lo}, 0xC200000'); A(f's_addc_u32 s5, {ws_hi}, 0')
    A('s_mov_b32 s6, 0x100000'); A('s_mov_b32 s7, 0x00020000')
    A('v_mbcnt_lo_u32_b32 v2, -1, 0'); A('v_mbcnt_hi_u32_b32 v2, -1, v2'); A('v_lshlrev_b32 v2, 2, v2')
    A('s_lshl_b32 s8, s2, 8'); A('v_add_u32 v2, s8, v2')
    A(f'buffer_store_dword v{vreg}, v2, s[4:7], 0 offen')
    A.label(label)
```

```python
from asmlib import *

LOG2E = 1.4426950408889634
import struct
def fbits(x): return '0x%08x' % struct.unpack('<I', struct.pack('<f', x))[0]

S_C, S_W, S_WQ, S_X, S_OUT, S_Q = 4, 8, 12, 16, 20, 24
sW, sWR, sWC = 28, 29, 30
sKIND = 31
sCRD, sCWR, sCOFF = 32, 33, 34
sWOFF = 35
sWB = 48
sCB = 49
sIT = 50; sOOB = 69
sT0, sT1, sT2, sT3 = 52, 53, 54, 55
sTMP = 56
sW4K = 58; sWQO = 59; sPQA = 51; sXFL = 70; sXRD = 71; sSIG = 61
S_DBG = 36; S_XRAW = 40
vLANE16 = 1
vCL = [2, 3]; vCA = 4
vWA = list(range(5, 13))
vDC = list(range(13, 17)); vDW = list(range(17, 21))
vST = [21, 22]
vXO = [30, 31]; vPF = 29; vPQ = 28
vT = list(range(23, 32))
ACCV = 32
def pair_regs(pi, second):
    if not second: return R('v', ACCV + 4*pi, 4)
    return R('v', 160 + 4*pi, 4) if pi < 24 else R('a', 4*(pi-24), 4)
def kv_tile(kind, tb, db):
    if kind == 'K': return pair_regs((db >> 1)*8 + tb, db & 1)
    return pair_regs(db*4 + (tb >> 1), tb & 1)
CF = [[R('a', 32 + p*32 + 4*tb, 4) for tb in range(8)] for p in range(2)]
WR = [R('a', 96 + 4*i, 4) for i in range(4)]
XN = [[R('a', 112 + (qb*14 + s)*4, 4) for s in range(14)] for qb in range(2)]
WBASE = 98304

def w_dma(srdw, slot, soff):
    l = [f's_add_u32 m0, s{sWB}, {slot*16384}']
    l += [f'buffer_load_dwordx4 v{vDW[j]}, s[{srdw}:{srdw+3}], {soff} offen offset:{1024*j} lds' for j in range(4)]
    return l
def c_dma(hf):
    l = [f's_add_u32 m0, s{sCWR}, {4096*hf}' ]
    l += [f'buffer_load_dwordx4 v{vDC[j]}, s[{S_C}:{S_C+3}], s{sTMP+hf} offen offset:{1024*j} lds' for j in range(4)]
    return l

def w_read(dst, db, slot, tag):
    return [Ins(f'ds_read_b64_tr_b16 {dst.sub(0,2)}, v{vWA[db & 7]} offset:{slot*16384 + (db >> 3)*256}', lds=tag + 'a'),
            Ins(f'ds_read_b64_tr_b16 {dst.sub(2,2)}, v{vWA[db & 7]} offset:{slot*16384 + (db >> 3)*256 + 2048}', lds=tag + 'b')]

def kv_kstep(st, kind, t, first=False, wsrc=None, cdma=True, nextc=True, nextw=True, vm=12, extra=None, waits=None, wtag=None, pf=False):
    A = st.A
    p = t & 1
    fill = {g: [] for g in range(-1, 64)}
    if t & 1:
        fill[-1] += [f's_add_u32 s{sCWR}, s{sCRD}, s{sCB}',
                     f's_add_u32 s{sCRD}, s{sCRD}, 0x8000',
                     f's_cmp_eq_u32 s{sCRD}, 0x18000',
                     f's_cselect_b32 s{sCRD}, 0, s{sCRD}',
                     f's_add_u32 s{sCOFF}, s{sCOFF}, 128',
                     f's_mov_b32 s{sTMP}, s{sCOFF}',
                     f's_add_u32 s{sTMP+1}, s{sCOFF}, 0x10000']
    if nextc:
        fill[-1].append(f'v_add_u32 v{vCA}, s{sCRD}, v{vCL[(t+1) & 1]}')
    mf = []
    for db in range(8):
        w = WR[db % 4]
        for tb in range(8):
            d = kv_tile(kind, tb, db)
            c = '0' if first else d
            need = (f'W{t}_{db}a', f'W{t}_{db}b') if tb == 0 else ()
            if db == 0: need = need + (f'C{t}_{tb}',)
            if kind == 'K': mf.append(mfma16(d, w, CF[p][tb], c, need))
            else:           mf.append(mfma16(d, CF[p][tb], w, c, need))
        g = db*8
        nd = db + 2
        if nd < 8:
            r = w_read(WR[nd % 4], nd, t % 4, f'W{t}_{nd}')
            fill[g] .append(r[0]); fill[g+1].append(r[1])
        elif nextw:
            r = w_read(WR[nd % 4], nd - 8, (t+1) % 4, f'W{(t+1)%4}_{nd-8}')
            fill[g].append(r[0]); fill[g+1].append(r[1])
        if nextc and db < 4:
            for k in range(2):
                tb = 2*db + k
                fill[g+2+k].append(Ins(f'ds_read_b128 {CF[1-p][tb]}, v{vCA} offset:{2048*tb}', lds=f'C{(t+1)%4}_{tb}'))
    if wsrc is not None:
        l = w_dma(wsrc[0], (t+3) % 4, wsrc[1])
        fill[30].append(l[0])
        for j in range(4): fill[34 + 3*j].append(Ins(l[1+j], vm=wtag))
        fill[45].append(f's_add_u32 {wsrc[1]}, {wsrc[1]}, 0x40000')
    if cdma:
        hf = 0 if (t & 1) else 1
        l = c_dma(hf)
        fill[46].append(l[0])
        for j in range(4): fill[49 + 3*j].append(l[1+j])
    if pf:
        if t == 0:
            fill[62].append(f'buffer_load_dword a254, v{vPQ}, s[{S_WQ}:{S_WQ+3}], s{sPQA} offen')
    if extra:
        gaps = list(range(46, 64)) + list(range(3, 30))
        flat = [x for g in extra for x in g]
        order = sorted(range(len(flat)), key=lambda n: n)
        gs = list(range(3, 30, 1)) + list(range(46, 63))
        n = len(flat); per = max(1, -(-n // len(gs)))
        k = 0
        for g in gs:
            for _ in range(per):
                if k < n: fill[g].append(flat[k]); k += 1
        assert k == n
    st.emit_all(gapfill(mf, fill))
    if waits is not None:
        for w in waits: st.wait_vm(w)
    else:
        A(f's_waitcnt vmcnt({vm})')
    A('s_barrier')
    if LSTAMP: lane_stamp(A, 0, 101)

_c = lambda slot, half: 32768*slot + 16384*half
_w = lambda slot: WBASE + 16384*slot
QSLOT = [_c(1, 0), _c(1, 1), _w(0), _c(2, 0), _c(2, 1), _w(1), _w(2), _c(0, 0), _c(0, 1), _w(3)]
QSLOT += QSLOT[:4]
def wq_dma(tau, srdw=S_WQ, rowbytes=8192):
    l = [f's_add_u32 m0, s{sW4K}, {QSLOT[tau]}', f's_mov_b32 s{sWQO}, {tau*32*rowbytes}']
    l += [Ins(f'buffer_load_dwordx4 v{vDW[j]}, s[{srdw}:{srdw+3}], s{sWQO} offen offset:{1024*j} lds', vm=f'q{tau}') for j in range(4)]
    return l
def xn_loads():
    l = []
    for n in range(28):
        qb, s_ = divmod(n, 14)
        l.append(f's_mov_b32 s{sWQO}, {1024*(s_ & ~3)}')
        l.append(Ins(f'buffer_load_dwordx4 {XN[qb][s_]}, v{vXO[qb]}, s[{S_X}:{S_X+3}], s{sWQO} offen offset:{1024*(s_ & 3)} sc1', vm=f'x{s_}'))
    return [l[2*n:2*n+2] for n in range(28)]

def qk_tile(db, qb):
    n = db*2 + qb
    return R('v', 160 + 4*n, 4) if n < 24 else R('a', 4*(n-24), 4)

def kv_path(A, kind):
    L = f'k1_{kind}'
    A.label(L)
    st = Stream(A)
    A(f'v_add_u32 v{vCA}, s{sCRD}, v{vCL[0]}')
    for tb in range(8):
        st.emit(Ins(f'ds_read_b128 {CF[0][tb]}, v{vCA} offset:{2048*tb}', lds=f'C0_{tb}'))
    for db in range(2):
        st.emit_all(w_read(WR[db], db, 0, f'W0_{db}'))
    q0 = list(st.q)
    sw = f's{sWOFF}'
    A(f's_mov_b32 s{sPQA}, s{sOOB}')
    for t in range(4):
        kv_kstep(st, kind, t, first=(t == 0), wsrc=(S_W, sw), pf=True, vm=[15, 13, 12, 12][t])
    qs = list(st.q)
    A(f's_mov_b32 s{sIT}, 6'); A(f'v_mov_b32 v23, s{sXRD}')
    A.label(L + '_loop')
    st2 = Stream(A, qs)
    A(f's_cmp_eq_u32 s{sIT}, 2'); A(f's_cselect_b32 s{sPQA}, 0, s{sOOB}')
    A(f's_cmp_eq_u32 s{sIT}, s{sSIG}'); A(f's_cbranch_scc0 {L}_nosig')
    A(f's_cmp_eq_u32 s{sW}, 0'); A(f's_cbranch_scc0 {L}_nosig')
    A('s_mov_b64 exec, 1'); A(f'v_mov_b32 v24, 1'); A(f'v_mov_b32 v25, s{sXFL}')
    A(f'buffer_store_byte v24, v25, s[{S_DBG}:{S_DBG+3}], 0 offen sc1')
    A('s_mov_b64 exec, -1')
    A.label(f'{L}_nosig')
    A(f's_cmp_eq_u32 s{sIT}, 1'); A(f's_cbranch_scc0 {L}_nofl')
    A(f'buffer_load_dwordx4 v[24:27], v23, s[{S_DBG}:{S_DBG+3}], 0 offen sc1')
    A.label(f'{L}_nofl')
    for t in range(4):
        kv_kstep(st2, kind, t, wsrc=(S_W, sw), pf=True, vm=[13, 13, 12, 12][t])
    assert st2.q == qs, (st2.q, qs)
    A(f's_sub_u32 s{sIT}, s{sIT}, 1')
    A(f's_cmp_lg_u32 s{sIT}, 0')
    A(f's_cbranch_scc1 {L}_loop')
    A('s_mov_b32 s68, 0')
    A.label(f'{L}_poll')
    A('v_and_b32 v24, v24, v25'); A('v_and_b32 v26, v26, v27'); A('v_and_b32 v24, v24, v26'); A('s_nop 0')
    A('v_readfirstlane_b32 s67, v24'); A('s_add_u32 s68, s68, 1')
    A('s_cmp_eq_u32 s67, 0x01010101'); A(f's_cbranch_scc1 {L}_ok')
    A('s_cmp_lt_u32 s68, 0x40000'); A(f's_cbranch_scc0 {L}_ok')
    A('s_sleep 4')
    A(f'buffer_load_dwordx4 v[24:27], v23, s[{S_DBG}:{S_DBG+3}], 0 offen sc1')
    A('s_waitcnt vmcnt(0)')
    A(f's_branch {L}_poll')
    A.label(f'{L}_ok')
    st3 = Stream(A, qs, ['c']*4 + ['W30']*4 + ['c']*4)
    xl = xn_loads()
    X = lambda a, b: sum(xl[a:b], [])
    xo = [0, 14, 1, 15, 2, 16, 3, 17, 4, 18, 5, 19, 6, 20, 7, 21, 8, 22, 9, 23, 10, 24, 11, 25, 12, 26, 13, 27]
    xl = [xl[n] for n in xo]
    kv_kstep(st3, kind, 0, wsrc=None, cdma=False, waits=['c'],
             extra=[[w_dma(S_W, 3, sw)[0]] + [Ins(y, vm='W31') for y in w_dma(S_W, 3, sw)[1:]], X(0, 6)])
    kv_kstep(st3, kind, 1, wsrc=None, cdma=False, waits=['W31'], extra=[wq_dma(0), wq_dma(1), X(6, 8), wq_dma(2)])
    kv_kstep(st3, kind, 2, wsrc=None, cdma=False, waits=['x2'], extra=[wq_dma(3), X(8, 11), wq_dma(4), wq_dma(5)])
    kv_kstep(st3, kind, 3, wsrc=None, cdma=False, nextc=False, nextw=False, waits=['q2'], extra=[wq_dma(6), X(11, 14), wq_dma(7)])
    assert not st3.q, st3.q
    if kind == 'K': ST.stamp(A)
    else:
        ST.n -= 1; ST.stamp(A)
    st3.emit_all(wq_dma(8)); st3.emit_all(wq_dma(9))
    def pack(pi):
        t0, t1 = pair_regs(pi, 0), pair_regs(pi, 1)
        if t1.kind == 'a':
            tm = R('v', 24, 4)
            for k in range(4): A(f'v_accvgpr_read_b32 {tm[k]}, {t1[k]}')
            t1 = tm
        A(f'v_cvt_pk_bf16_f32 {t0[0]}, {t0[0]}, {t0[1]}'); A(f'v_cvt_pk_bf16_f32 {t0[1]}, {t0[2]}, {t0[3]}')
        A(f'v_cvt_pk_bf16_f32 {t0[2]}, {t1[0]}, {t1[1]}'); A(f'v_cvt_pk_bf16_f32 {t0[3]}, {t1[2]}, {t1[3]}')
    A('s_nop 3')
    rest = X(14, 28)
    for pi in range(32):
        pack(pi)
        if rest and pi % 2 == 0:
            st3.emit(rest.pop(0)); st3.emit(rest.pop(0))
    assert not rest
    stores = []
    for pi in range(32):
        if kind == 'K':
            sp, tb = divmod(pi, 8); vo, imm, so = vST[sp >> 1], (sp & 1)*2048 + (tb & 1)*1024, sT0 + (tb >> 1)
        else:
            db, p2 = divmod(pi, 4); vo, imm, so = vST[db >> 2], (db & 3)*1024, sT0 + p2
        stores.append(Ins(f'buffer_store_dwordx4 {pair_regs(pi, 0)}, v{vo}, s[{S_OUT}:{S_OUT+3}], s{so} offen offset:{imm}{STFLAG}', vm='st'))
    A(f's_lshl_b32 s67, s{sWC}, 8'); A(f's_add_u32 s67, s67, {WBASE - QSLOT[0]}')
    for db in range(8):
        A(f'v_subrev_u32 v{vWA[db]}, s67, v{vWA[db]}')
    st3.wait_vm('q7', 'x6')
    tile = q_phase(A, st3.vq, vWA, wq_dma, lambda qb, s_: XN[qb][s_], lambda db: (db & 7, (db >> 3)*256, (db >> 3)*256 + 2048),
                   tile=qk_tile, extra=stores)
    A('s_branch k1_q')

STFLAG = ''
def set_opt(**kw):
    global STFLAG
    OPT.update(kw)
    STFLAG = OPT.get('stflag', '')
VQ_AFTER = {}

def q_phase(A, vq, rdreg, dmafn, xb, imm_of, nsteps=14, tile=None, extra=None):
    NR = 8
    RING = [R('a', 32 + 4*i, 4) for i in range(NR)]
    LA = 6
    if tile is None:
        tile = lambda db, qb: R('v', ACCV + (db*2+qb)*4, 4)
    extra = list(extra or [])
    st = Stream(A, None, vq)
    st.wait_vm('q7'); A('s_barrier')
    def rd(k):
        db = k % 16
        r, i0, i1 = imm_of(db)
        d = RING[k % NR]
        return [Ins(f'ds_read_b64_tr_b16 {d.sub(0,2)}, v{rdreg[r]} offset:{i0}', lds=f'Q{k}a'),
                Ins(f'ds_read_b64_tr_b16 {d.sub(2,2)}, v{rdreg[r]} offset:{i1}', lds=f'Q{k}b')]
    for k in range(LA):
        st.emit_all(rd(k))
    for s in range(nsteps):
        fill = {g: [] for g in range(-1, 32)}
        mf = []
        delta = (QSLOT[s+1] - QSLOT[s]) & 0xffffffff if s + 1 < nsteps else None
        last_use = {}
        for db in range(16):
            k = s*16 + db
            for qb in range(2):
                d = tile(db, qb)
                mf.append(mfma16(d, RING[k % NR], xb(qb, s), '0' if s == 0 else d, (f'Q{k}a', f'Q{k}b') if qb == 0 else ()))
            if k + LA < nsteps*16:
                nk = k + LA; ns, ndb = divmod(nk, 16)
                r = imm_of(ndb)[0]
                if ns == s + 1 and all(imm_of(x)[0] != r for x in range(ndb)):
                    fill[2*db].append(f'v_add_u32 v{rdreg[r]}, {hex(delta)}, v{rdreg[r]}')
                rr = rd(nk)
                fill[2*db].append(rr[0]); fill[2*db+1].append(rr[1])
        if s > 0:
            d0 = (QSLOT[s] - QSLOT[s-1]) & 0xffffffff
            seen = set(imm_of(x)[0] for x in range(LA))
            for r in range(len(rdreg)):
                if r not in seen: fill[-1].append(f'v_add_u32 v{rdreg[r]}, {hex(d0)}, v{rdreg[r]}')
        if s == 4:
            l = []
            for tau in range(10, nsteps): l += dmafn(tau)
            for n, x in enumerate(l): fill[min(1 + n, 31)].append(x)
        if extra and s != 4:
            for g in (5, 15, 25):
                if extra: fill[g].append(extra.pop(0))
        st.emit_all(gapfill(mf, fill))
        if s == 3:
            st.wait_vm('q9', 'q8'); A('s_barrier')
        if s == 6: st.wait_vm('x13')
        if s == 8:
            st.wait_vm(f'q{nsteps-1}'); A('s_barrier')
    assert not extra
    return tile

ST = Stamps(False)
LSTAMP = False
OPT = {}
def gen_k1(A, stamps=False):
    global ST
    ST = Stamps(stamps)
    global LSTAMP
    LSTAMP = stamps and OPT.get('lane', False)
    kernel_header(A, 'k1_kernel')
    A('s_cmp_ge_u32 s2, 256'); A('s_cbranch_scc1 k1_end')
    A('s_load_dwordx4 s[36:39], s[0:1], 0')
    A('s_load_dwordx4 s[40:43], s[0:1], 16')
    A('s_load_dwordx2 s[44:45], s[0:1], 32')
    A('s_load_dwordx2 s[46:47], s[0:1], 96')
    A('s_load_dwordx2 s[70:71], s[0:1], 88')
    A('v_lshrrev_b32 v23, 6, v0')
    A('v_and_b32 v0, 63, v0')
    A(f'v_readfirstlane_b32 s{sW}, v23')
    A('s_and_b32 s60, s2, 7')
    A('s_lshr_b32 s61, s2, 3')
    A('s_and_b32 s62, s61, 7')
    A('s_lshr_b32 s63, s61, 3')
    A(f's_lshr_b32 s{sKIND}, s63, 1')
    A('s_and_b32 s63, s63, 1')
    A('s_lshl_b32 s64, s60, 1')
    A('s_add_u32 s63, s64, s63')
    A('s_lshr_b32 s65, s61, 4')
    A('s_add_u32 s65, s64, s65')
    A('s_and_b32 s66, s61, 15')
    A(f's_lshr_b32 s{sWR}, s{sW}, 1')
    A(f's_and_b32 s{sWC}, s{sW}, 1')
    A('s_waitcnt lgkmcnt(0)')
    ST.stamp(A)
    srd(A, S_X, 's46', 's47', 128*14336, add=WS_XN)
    srd(A, S_C, 's38', 's39', 2048*1024*2)
    A('s_lshl_b32 s67, s65, 9')
    A(f's_add_u32 s{S_WQ}, s40, s67'); A(f's_addc_u32 s{S_WQ+1}, s41, 0')
    A(f's_sub_u32 s{S_WQ+2}, {448*8192}, s67'); A(f's_mov_b32 s{S_WQ+3}, 0x00020000')
    A(f's_cmp_eq_u32 s{sKIND}, 0')
    A('s_cselect_b32 s68, s42, s44'); A('s_cselect_b32 s69, s43, s45')
    A('s_lshl_b32 s67, s63, 9')
    A(f's_add_u32 s{S_W}, s68, s67'); A(f's_addc_u32 s{S_W+1}, s69, 0')
    A(f's_sub_u32 s{S_W+2}, {1024*8192}, s67'); A(f's_mov_b32 s{S_W+3}, 0x00020000')
    A(f's_lshl_b32 s67, s{sKIND}, 24'); A('s_lshl_b32 s68, s63, 20'); A('s_add_u32 s67, s67, s68')
    A(f's_add_u32 s{S_OUT}, s46, s67'); A(f's_addc_u32 s{S_OUT+1}, s47, 0')
    A(f's_mov_b32 s{S_OUT+2}, 0x100000'); A(f's_mov_b32 s{S_OUT+3}, 0x00020000')
    A('s_lshl_b32 s67, s65, 20'); A(f's_add_u32 s67, s67, {WS_Q}')
    A(f's_add_u32 s{S_Q}, s46, s67'); A(f's_addc_u32 s{S_Q+1}, s47, 0')
    A(f's_mov_b32 s{S_Q+2}, 0x100000'); A(f's_mov_b32 s{S_Q+3}, 0x00020000')
    srd(A, S_XRAW, 's36', 's37', 2048*448*2)
    srd(A, S_DBG, 's70', 's71', 256)
    A('s_lshl_b32 s67, s2, 3'); A(f's_lshl_b32 s68, s{sW}, 1'); A('s_add_u32 s67, s67, s68')
    A('v_and_b32 v25, 1, v0'); A('v_add_u32 v25, s67, v25')
    A('v_lshrrev_b32 v26, 1, v0')
    A('s_movk_i32 s68, 896'); A('v_mul_lo_u32 v27, v25, s68'); A('v_lshl_add_u32 v27, v26, 4, v27')
    A('v_add_u32 v28, 512, v27'); A('v_mov_b32 v29, 0x7f000000'); A('v_cmp_gt_u32 vcc, 24, v26'); A('s_nop 1')
    A('v_cndmask_b32 v28, v29, v28, vcc')
    A(f'buffer_load_dwordx4 v[32:35], v27, s[{S_XRAW}:{S_XRAW+3}], 0 offen')
    A(f'buffer_load_dwordx4 v[36:39], v28, s[{S_XRAW}:{S_XRAW+3}], 0 offen')
    A('v_lshrrev_b32 v27, 4, v25'); A('s_movk_i32 s68, 14336'); A('v_mul_lo_u32 v27, v27, s68')
    A('v_and_b32 v28, 15, v25'); A('v_lshl_add_u32 v27, v28, 4, v27')
    A('v_lshrrev_b32 v28, 2, v26'); A('v_lshl_add_u32 v27, v28, 10, v27')
    A('v_and_b32 v28, 3, v26'); A('v_lshl_add_u32 v44, v28, 8, v27')
    A('v_add_u32 v45, 0x2000, v44'); A('v_cndmask_b32 v45, v29, v45, vcc')
    A(f's_mov_b32 s{sXFL}, s2'); A(f's_lshl_b32 s{sXRD}, s66, 4')
    A('s_lshr_b32 s67, s2, 3'); A('s_and_b32 s67, s67, 3'); A(f's_sub_u32 s{sSIG}, 6, s67')
    A('v_and_b32 v23, 15, v0'); A('v_lshrrev_b32 v24, 4, v0')
    A(f'v_lshlrev_b32 v{vLANE16}, 4, v0')
    A('s_lshl_b32 s67, s62, 8'); A(f's_lshl_b32 s68, s{sW}, 6'); A('s_add_u32 s67, s67, s68')
    A('v_lshrrev_b32 v27, 3, v0'); A('v_add_u32 v27, s67, v27'); A('v_lshlrev_b32 v27, 11, v27')
    A('v_and_b32 v28, 7, v0')
    for j in range(4):
        A(f'v_xor_b32 v29, v28, v24' if j % 2 == 0 else f'v_add_u32 v29, 4, v24')
        if j % 2 == 1: A('v_xor_b32 v29, v28, v29')
        A(f'v_lshl_add_u32 v{vDC[j]}, v29, 4, v27')
        if j: A(f'v_add_u32 v{vDC[j]}, {j*(8*2048 - 1024)}, v{vDC[j]}')
    A('v_lshrrev_b32 v27, 5, v0'); A('v_and_b32 v28, 31, v0')
    A(f's_lshl_b32 s67, s{sW}, 3'); A(f's_and_b32 s68, s{sW}, 1'); A('s_lshl_b32 s68, s68, 2')
    for j in range(4):
        A(f'v_add_u32 v29, {2*j}, v27')
        A(f'v_and_b32 v30, 3, v29'); A('v_or_b32 v30, s68, v30'); A('v_lshlrev_b32 v30, 1, v30')
        A('v_xor_b32 v30, v28, v30')
        A('v_add_u32 v29, s67, v29'); A('v_lshlrev_b32 v29, 13, v29')
        A(f'v_lshl_add_u32 v{vDW[j]}, v30, 4, v29')
        if j: A(f'v_subrev_u32 v{vDW[j]}, {1024*j}, v{vDW[j]}')
    A(f's_lshl_b32 s{sWB}, s{sW}, 12'); A(f's_add_u32 s{sWB}, s{sWB}, {WBASE}')
    A(f's_lshl_b32 s{sCB}, s{sW}, 13')
    A(f's_mov_b32 s{sWOFF}, 0')
    def cstage(stage, halves):
        for hf in halves:
            A(f's_mov_b32 s{sTMP+hf}, {128*stage + 65536*hf}')
            A(f's_add_u32 s{sCWR}, s{sCB}, {32768*(stage % 3)}')
            l = c_dma(hf); A(l[0]); A('s_nop 0'); A.extend(l[1:])
    def wstage(t):
        l = w_dma(S_W, t % 4, f's{sWOFF}'); A(l[0]); A('s_nop 0'); A.extend(l[1:])
        A(f's_add_u32 s{sWOFF}, s{sWOFF}, 0x40000')
    cstage(0, (0, 1)); wstage(0); wstage(1); cstage(1, (0, 1)); wstage(2); cstage(2, (0,))
    A(f's_mov_b32 s{sCRD}, 0')
    A(f's_add_u32 s{sCWR}, s{sCB}, {32768*2}')
    A(f's_mov_b32 s{sCOFF}, {128*2}')
    A(f's_mov_b32 s{sTMP}, {128*2}'); A(f's_mov_b32 s{sTMP+1}, {128*2 + 65536}')
    A(f's_lshl_b32 s67, s{sWR}, 14')
    A('v_lshrrev_b32 v27, 1, v23')
    for s in range(2):
        A(f'v_add_u32 v28, {4*s}, v24'); A('v_xor_b32 v28, v28, v27'); A('v_lshlrev_b32 v28, 4, v28')
        A('v_lshl_add_u32 v28, v23, 7, v28'); A(f'v_add_u32 v{vCL[s]}, s67, v28')
    A('v_lshrrev_b32 v27, 2, v23')
    A('v_lshl_add_u32 v28, v24, 3, v27'); A('v_lshlrev_b32 v28, 9, v28')
    A('v_and_b32 v29, 3, v23'); A('v_lshl_add_u32 v28, v29, 3, v28')
    A(f's_lshl_b32 s67, s{sWC}, 8'); A(f's_add_u32 s67, s67, {WBASE}'); A('v_add_u32 v28, s67, v28')
    A('v_and_b32 v29, 1, v24'); A('v_lshl_or_b32 v29, v29, 2, v27'); A('v_lshlrev_b32 v29, 5, v29')
    for db in range(8):
        A(f'v_xor_b32 v30, {db*32}, v29'); A(f'v_add_u32 v{vWA[db]}, v28, v30')
    A('s_lshl_b32 s67, s62, 17'); A(f's_lshl_b32 s68, s{sWR}, 16'); A('s_add_u32 s67, s67, s68')
    A(f's_lshl_b32 s68, s{sWC}, 13'); A('s_add_u32 s67, s67, s68')
    A(f'v_add_u32 v{vST[0]}, s67, v{vLANE16}'); A(f'v_add_u32 v{vST[1]}, 0x1000, v{vST[0]}')
    for k in range(4): A(f's_mov_b32 s{sT0+k}, {16384*k}')
    A('s_lshl_b32 s67, s66, 3'); A(f's_lshl_b32 s68, s{sW}, 1'); A('s_add_u32 s67, s67, s68'); A('s_mul_i32 s67, s67, 14336')
    A(f'v_add_u32 v{vXO[0]}, s67, v{vLANE16}'); A(f'v_add_u32 v{vXO[1]}, 14336, v{vXO[0]}')
    A(f's_lshl_b32 s{sW4K}, s{sW}, 12')
    A(f's_mov_b32 s{sOOB}, 0x7f000000')
    A('s_mul_i32 s67, s66, 28'); A(f's_mul_i32 s68, s{sW}, 7'); A('s_add_u32 s67, s67, s68')
    A('v_bfe_u32 v27, v0, 2, 3'); A('v_add_u32 v27, s67, v27'); A('v_lshlrev_b32 v27, 13, v27')
    A('v_and_b32 v26, 3, v0'); A(f'v_lshl_add_u32 v{vPQ}, v26, 7, v27')
    A('s_waitcnt vmcnt(32)')
    A('s_mov_b32 s67, 0x3f803f80'); A('v_mov_b32 v40, 0'); A('v_mov_b32 v41, 0')
    for k in range(8):
        A(f'v_dot2c_f32_bf16 v40, s67, v{32+k}'); A(f'v_dot2c_f32_bf16 v41, v{32+k}, v{32+k}')
    A('s_nop 2')
    for r in (40, 41):
        for ror in (2, 4, 8):
            A('s_nop 1'); A(f'v_add_f32_dpp v{r}, v{r}, v{r} row_ror:{ror} row_mask:0xf bank_mask:0xf')
        A(f'v_mov_b32 v42, v{r}'); A('s_nop 1'); A(f'v_permlane16_swap_b32 v{r}, v42'); A('s_nop 1'); A(f'v_add_f32 v{r}, v{r}, v42')
        A(f'v_mov_b32 v42, v{r}'); A('s_nop 1'); A(f'v_permlane32_swap_b32 v{r}, v42'); A('s_nop 1'); A(f'v_add_f32 v{r}, v{r}, v42')
    A(f's_mov_b32 s67, {fbits(1.0/448)}'); A(f's_mov_b32 s68, {fbits(1e-5)}')
    A('v_mul_f32 v40, s67, v40'); A('v_mul_f32 v41, s67, v41'); A('v_fma_f32 v41, -v40, v40, v41')
    A('v_max_f32 v41, 0, v41'); A('v_add_f32 v41, s68, v41'); A('v_rsq_f32 v41, v41'); A(f's_mov_b32 s67, {fbits(LOG2E/16)}')
    A('v_mul_f32 v41, s67, v41'); A('v_mul_f32 v40, v40, v41')
    A('s_mov_b32 s67, 0xffff0000')
    for k in range(8):
        A(f'v_lshlrev_b32 v42, 16, v{32+k}'); A(f'v_and_b32 v43, s67, v{32+k}')
        A('v_fma_f32 v42, v42, v41, -v40'); A('v_fma_f32 v43, v43, v41, -v40')
        A(f'v_cvt_pk_bf16_f32 v{32+k}, v42, v43')
    A(f'buffer_store_dwordx4 v[32:35], v44, s[{S_X}:{S_X+3}], 0 offen sc1')
    A(f'buffer_store_dwordx4 v[36:39], v45, s[{S_X}:{S_X+3}], 0 offen sc1')
    ST.stamp(A)
    A('s_waitcnt vmcnt(18)')
    A('s_barrier')
    ST.stamp(A)
    if LSTAMP:
        A('s_mov_b32 s101, 0'); A('v_mov_b32 v0, 0'); lane_stamp(A, 0, 101)
    A(f's_cmp_eq_u32 s{sKIND}, 0')
    A('s_cbranch_scc0 k1_V')
    kv_path(A, 'K')
    kv_path(A, 'V')
    A.label('k1_q')
    ST.stamp(A)
    A('s_lshl_b32 s67, s66, 2'); A(f's_add_u32 s67, s67, s{sW}'); A('s_lshl_b32 s67, s67, 14')
    A(f'v_add_u32 v{vST[0]}, s67, v{vLANE16}')
    for k in range(4): A(f's_mov_b32 s{sT0+k}, {4096*k}')
    A('s_nop 7')
    for s in range(8):
        for qb in range(2):
            t0, t1 = qk_tile(2*s, qb), qk_tile(2*s+1, qb)
            f = 2*s + qb
            D = R('v', 32 + 4*f, 4)
            if t0.kind == 'a':
                for k in range(4): A(f'v_accvgpr_read_b32 v{24+k}, {t0[k]}')
                t0 = R('v', 24, 4)
            if t1.kind == 'a':
                for k in range(4): A(f'v_accvgpr_read_b32 v{28+k}, {t1[k]}')
                t1 = R('v', 28, 4)
            A(f'v_cvt_pk_bf16_f32 {D[0]}, {t0[0]}, {t0[1]}'); A(f'v_cvt_pk_bf16_f32 {D[1]}, {t0[2]}, {t0[3]}')
            A(f'v_cvt_pk_bf16_f32 {D[2]}, {t1[0]}, {t1[1]}'); A(f'v_cvt_pk_bf16_f32 {D[3]}, {t1[2]}, {t1[3]}')
            A(f'buffer_store_dwordx4 {D}, v{vST[0]}, s[{S_Q}:{S_Q+3}], s{sT0 + (f >> 2)} offen offset:{(f & 3)*1024}')
    if stamps:
        A('s_waitcnt vmcnt(0)')
        ST.stamp(A)
    if LSTAMP: lane_dump(A, 0, 's46', 's47', sW, 'k1_ld')
    ST.dump(A, 's46', 's47', sW, 'k1_dumpend')
    A.label('k1_end')
    A('s_endpgm')

if __name__ == '__main__':
    A = Asm()
    A('; @launch kernel=k1_kernel grid=(256,1,1) block=(256,1,1) lds=163840')
    A('.amdgcn_target "amdgcn-amd-amdhsa--gfx950"')
    import sys
    gen_k1(A, stamps=('stamp' in sys.argv))
    kernel_desc(A, 'k1_kernel')
    open('k1.s', 'w').write(A.text())
    v = check_hazards(A.lines, 'k1')
    print(len(v), 'hazard reports;', len(A.lines), 'lines')
```

```python
from asmlib import *
from k1 import fbits

S_K, S_V, S_Q, S_WO, S_P = 4, 8, 12, 16, 20
sW = 28; sH = 29; sQT = 30; sB0 = 31; sB1 = 32; sWE = 33
sA = 34
sKOFF = 35; sVOFF = 36
sW4K = 37
sNIT = 38; sT = 39; sT2 = 40; sTHR = 41; sNEGINF = 42
sM = 44
sWS = 52
S_BO = 24; S_DBG = 56; sMODE = 43; sPI = 63; sNB = 64; sFL = 65
NB0 = 28
BO = lambda f: R('a', 96 + 4*f, 4)
vL16 = 1; vKA = 2; vVA = [3, 4]; vDK = 5; vL = [6, 7]; vMX = [10, 11]; vD = 12
vOA = list(range(13, 21)); vDO = list(range(21, 25)); vST = [25, 26]; vT = [27, 28, 29, 30, 31]
O = lambda db, qb: R('v', 32 + (db*2 + qb)*4, 4)
S = lambda p, kk, qb: R('v', 160 + 16*p + (kk*2 + qb)*4, 4)
P = lambda p, qb: R('v', 192 + 8*p + 4*qb, 4)
NM = lambda qb: R('v', 208 + 4*qb, 4)
Q = lambda s, qb: R('a', (s*2 + qb)*4, 4)
NF = 8; LA = 6
RING = [R('a', 64 + 4*i, 4) for i in range(NF)]
THR = 20.0
ST = Stamps(False)

def frag_read(i, p, tagp):
    dst = RING[i % NF]
    if i < 16:   return Ins(f'ds_read_b128 {dst}, v{vVA[1-p]} offset:{1024*i}', lds=f'{tagp}{i}')
    elif i < 32: return Ins(f'ds_read_b128 {dst}, v{vKA} offset:{1024*(i-16)}', lds=f'{tagp}{i}')
    else:        return Ins(f'ds_read_b128 {dst}, v{vVA[p]} offset:{1024*(i-32)}', lds=f'n{i-32}')

def dma_v():
    return [f's_add_u32 s{sT}, s{sA}, 0x8000', f's_and_b32 s{sT}, s{sT}, 0xc000', f's_add_u32 s{sT}, s{sT}, s{sW4K}', f's_add_u32 m0, s{sT}, 0x10000'] + \
           [Ins(f'buffer_load_dwordx4 v{vDK}, s[{S_V}:{S_V+3}], s{sVOFF} offen offset:{1024*k} lds', vm='V') for k in range(4)]
def dma_k():
    return [f's_add_u32 m0, s{sA}, s{sW4K}'] + \
           [Ins(f'buffer_load_dwordx4 v{vDK}, s[{S_K}:{S_K+3}], s{sKOFF} offen offset:{1024*k} lds', vm='K') for k in range(4)]

def emit_dma(st, l):
    for x in l:
        st.emit(x)
        if isinstance(x, str) and ' m0,' in x: st.emit('s_nop 0')

def maxtree(p):
    r = [S(p, kk, qb)[k] for kk in range(2) for qb in range(2) for k in range(4)]
    l = [f'v_max3_f32 v{vMX[0]}, {r[0]}, {r[1]}, {r[2]}']
    for k in range(6): l.append(f'v_max3_f32 v{vMX[0]}, v{vMX[0]}, {r[3+2*k]}, {r[4+2*k]}')
    l.append(f'v_max_f32 v{vMX[0]}, v{vMX[0]}, {r[15]}')
    l.append(f'v_cmp_lt_f32 vcc, s{sTHR}, v{vMX[0]}')
    return l

def expseq(p):
    seq = []
    order = [(qb, kk, k) for qb in range(2) for kk in range(2) for k in range(4)]
    pend_add = []; pend_cvt = []
    for n, (qb, kk, k) in enumerate(order):
        r = S(p, kk, qb)[k]
        seq.append(f'v_exp_f32 {r}, {r}')
        if pend_add: seq.append(pend_add.pop(0))
        if pend_cvt and n % 2 == 1: seq.append(pend_cvt.pop(0))
        pend_add.append(f'v_add_f32 v{vL[qb]}, v{vL[qb]}, {r}')
        if k % 2 == 1:
            pend_cvt.append(f'v_cvt_pk_bf16_f32 {P(p, qb)[kk*2 + k//2]}, {S(p, kk, qb)[k-1]}, {r}')
    seq.append('s_nop 0')
    seq += pend_add + pend_cvt
    return seq

def pv_mfmas(p, tagp):
    m = []
    for db in range(16):
        for qb in range(2):
            m.append(mfma16(O(db, qb), RING[db % NF], P(1-p, qb), O(db, qb), (f'{tagp}{db}',) if qb == 0 else ()))
    return m
def qk_mfmas(p_out, tagp, base=16, czero=False):
    m = []
    for f in range(16):
        s, kk = divmod(f, 2)
        for qb in range(2):
            d = S(p_out, kk, qb)
            c = ('0' if czero else NM(qb)) if s == 0 else d
            m.append(mfma16(d, RING[(base + f) % NF], Q(s, qb), c, (f'{tagp}{base+f}',) if qb == 0 else ()))
    return m

def book_start(p):
    return [f's_add_u32 s{sT}, s{sA}, 0x4000', f's_and_b32 s{sT}, s{sT}, 0xc000', f'v_add_u32 v{vKA}, s{sT}, v{vL16}',
            f's_add_u32 s{sT}, s{sA}, 0x10000', f'v_add_u32 v{vVA[p]}, s{sT}, v{vL16}']
def book_end():
    return [f's_add_u32 s{sA}, s{sA}, 0x4000', f's_and_b32 s{sA}, s{sA}, 0xc000',
            f's_add_u32 s{sKOFF}, s{sKOFF}, 0x4000', f's_add_u32 s{sVOFF}, s{sVOFF}, 0x4000']

def full_iter(st, p, lab, dv=True, dk=True, mid_label=None, nextv=True):
    A = st.A
    st.q = [('c' + x[1:]) if x.startswith('n') else x for x in st.q]
    pv = pv_mfmas(p, 'c'); qk = qk_mfmas(1-p, 'c')
    fill = {g: [] for g in range(-1, 64)}
    fill[-1] += book_start(p)
    for i in range(32):
        k = i + LA
        if k < 32 or nextv:
            fill[2*i].append(frag_read(k, p, 'c'))
    d = []
    if dv: d += dma_v()
    if dk: d += dma_k()
    gaps = [1, 1, 3, 3, 5, 7, 9, 11, 13, 15, 17, 19, 21] if dv else [1, 3, 5, 7, 9]
    for g, x in zip(gaps, d): fill[g].append(x)
    mt = maxtree(p)
    for k, x in enumerate(mt): fill[10 + 2*k + 1].append(x)
    part1 = gapfill(pv, {g: fill[g] for g in range(-1, 32)})
    st.emit_all(part1)
    A(f's_cbranch_vccnz {lab}_slow')
    A.label(f'{lab}_back')
    if mid_label: A.label(mid_label)
    ex = expseq(p)
    fill2 = {g: list(fill[32 + g]) for g in range(32)}
    n = len(ex); k = 0
    for g in range(32):
        tgt = (n*(g+1) + 31) // 32
        while k < tgt:
            fill2[g].append(ex[k]); k += 1
    fill2[30] += book_end()
    st.emit_all(gapfill(qk, fill2))

def slow_path(A, p, lab):
    A.label(f'{lab}_slow')
    A('s_nop 7')
    rowmax_update(A, p, first=False)
    A(f's_branch {lab}_back')

def xreduce(A, r, op, tmp):
    A(f'v_mov_b32 v{tmp}, v{r}'); A('s_nop 1'); A(f'v_permlane16_swap_b32 v{r}, v{tmp}'); A('s_nop 1'); A(f'{op} v{r}, v{r}, v{tmp}')
    A(f'v_mov_b32 v{tmp}, v{r}'); A('s_nop 1'); A(f'v_permlane32_swap_b32 v{r}, v{tmp}'); A('s_nop 1'); A(f'{op} v{r}, v{r}, v{tmp}')

def rowmax_update(A, p, first):
    for qb in range(2):
        r = [S(p, kk, qb)[k] for kk in range(2) for k in range(4)]
        m = vMX[qb]
        A(f'v_max3_f32 v{m}, {r[0]}, {r[1]}, {r[2]}')
        A(f'v_max3_f32 v{m}, v{m}, {r[3]}, {r[4]}')
        A(f'v_max3_f32 v{m}, v{m}, {r[5]}, {r[6]}')
        A(f'v_max_f32 v{m}, v{m}, {r[7]}')
        xreduce(A, m, 'v_max_f32', vT[0])
        if not first:
            A(f'v_max_f32 v{m}, 0, v{m}')
        for x in r: A(f'v_sub_f32 {x}, {x}, v{m}')
        if first:
            for k in range(4): A(f'v_sub_f32 {NM(qb)[k]}, 0, v{m}')
        else:
            for k in range(4): A(f'v_sub_f32 {NM(qb)[k]}, {NM(qb)[k]}, v{m}')
            A(f'v_exp_f32 v{vT[1]}, -v{m}')
            A('s_nop 0')
            A(f'v_mul_f32 v{vL[qb]}, v{vL[qb]}, v{vT[1]}')
            for db in range(16):
                for k in range(4): A(f'v_mul_f32 {O(db, qb)[k]}, {O(db, qb)[k]}, v{vT[1]}')

def apply_mask(A, p):
    for r in range(4):
        A(f'v_cmp_gt_i32 s[{sM+2*r}:{sM+2*r+1}], {r}, v{vD}')
    A(f'v_mov_b32 v{vT[0]}, s{sNEGINF}')
    for r in range(4):
        for t in (S(p, 0, 0), S(p, 1, 1)):
            A(f'v_cndmask_b32 {t[r]}, {t[r]}, v{vT[0]}, s[{sM+2*r}:{sM+2*r+1}]')
        A(f'v_mov_b32 {S(p, 1, 0)[r]}, s{sNEGINF}')

def pv_only(st, p):
    A = st.A
    st.q = [('c' + x[1:]) if x.startswith('n') else x for x in st.q]
    pv = pv_mfmas(p, 'c')
    fill = {g: [] for g in range(-1, 32)}
    for i in range(16):
        k = i + LA
        if k < 16: fill[2*i].append(frag_read(k, p, 'c'))
    st.emit_all(gapfill(pv, fill))

def oproj(A, first_slabs_issued=False):
    C = lambda s, qb: O(2*s, qb)
    ACC = lambda par, nb, qb: O(2*(par*4 + nb) + 1, qb)
    st = Stream(A)
    def slab_dma(sg):
        slot = sg % 4
        l = []
        for a in range(2):
            l.append(f's_add_u32 m0, s{sT2}, {slot*32768 + 4096*a}')
            l.append(f's_mov_b32 s{sT}, {128*sg + 28672*a}')
            l += [Ins(f'buffer_load_dwordx4 v{vDO[b]}, s[{S_WO}:{S_WO+3}], s{sT} offen offset:{1024*b} lds', vm=f'W{sg}') for b in range(4)]
        return l
    A(f's_lshl_b32 s{sT2}, s{sW}, 13')
    for sg in range(4): st.emit_all(slab_dma(sg))
    NR = 8; LAo = 6
    def rd(k):
        sg, r = divmod(k, 32); nb, s = divmod(r, 8)
        slot = sg % 4
        a = vOA[nb + 4*(slot >> 1)]; off = (slot & 1)*32768 + s*4096
        d = RING[k % NR]
        return [Ins(f'ds_read_b64_tr_b16 {d.sub(0,2)}, v{a} offset:{off}', lds=f'o{k}a'),
                Ins(f'ds_read_b64_tr_b16 {d.sub(2,2)}, v{a} offset:{off + 2048}', lds=f'o{k}b')]
    def stores(sg):
        par = sg & 1; l = []
        l.append(f's_mov_b32 s{sT}, {2048*sg}')
        for half in range(2):
            for qb in range(2):
                t0, t1 = ACC(par, 2*half, qb), ACC(par, 2*half+1, qb)
                l += [f'v_cvt_pk_bf16_f32 {t0[0]}, {t0[0]}, {t0[1]}', f'v_cvt_pk_bf16_f32 {t0[1]}, {t0[2]}, {t0[3]}',
                      f'v_cvt_pk_bf16_f32 {t0[2]}, {t1[0]}, {t1[1]}', f'v_cvt_pk_bf16_f32 {t0[3]}, {t1[2]}, {t1[3]}',
                      Ins(f'buffer_store_dwordx4 {t0}, v{vST[qb]}, s[{S_P}:{S_P+3}], s{sT} offen offset:{1024*half}', vm='st')]
        return l
    st.wait_vm('W0'); A('s_barrier')
    for k in range(LAo): st.emit_all(rd(k))
    for sg in range(7):
        par = sg & 1
        mf = []; fill = {g: [] for g in range(-1, 64)}
        for r in range(32):
            nb, s = divmod(r, 8); k = sg*32 + r
            for qb in range(2):
                d = ACC(par, nb, qb)
                mf.append(mfma16(d, RING[k % NR], C(s, qb), '0' if s == 0 else d, (f'o{k}a', f'o{k}b') if qb == 0 else ()))
            if k + LAo < 7*32 and (r + LAo < 32):
                x = rd(k + LAo); fill[2*r].append(x[0]); fill[2*r+1].append(x[1])
        if sg > 0:
            sl = stores(sg - 1)
            for n, x in enumerate(sl): fill[4 + 2*n].append(x)
        st.emit_all(gapfill(mf, fill))
        if sg + 1 < 7:
            st.wait_vm(f'W{sg+1}'); A('s_barrier')
            if sg + 4 < 7: st.emit_all(slab_dma(sg + 4))
            for r in range(LAo): st.emit_all(rd((sg+1)*32 + r))
    A('s_nop 7')
    st.emit_all(stores(6))

def gen_k2(A, stamps=False):
    global ST
    ST = Stamps(stamps)
    kernel_header(A, 'k2_kernel')
    A('s_cmp_ge_u32 s2, 256'); A('s_cbranch_scc1 k2_end')
    A('s_load_dwordx2 s[54:55], s[0:1], 40')
    A('s_load_dwordx2 s[66:67], s[0:1], 88')
    A(f's_load_dwordx2 s[{sWS}:{sWS+1}], s[0:1], 96')
    A('v_lshrrev_b32 v27, 6, v0'); A('v_and_b32 v0, 63, v0'); A(f'v_readfirstlane_b32 s{sW}, v27')
    A('s_and_b32 s60, s2, 7'); A('s_lshr_b32 s61, s2, 3')
    A('s_lshr_b32 s62, s61, 4'); A('s_lshl_b32 s60, s60, 1'); A(f's_add_u32 s{sH}, s60, s62')
    A('s_and_b32 s61, s61, 15')
    A(f's_and_b32 s{sPI}, s61, 7')
    A(f's_lshl_b32 s62, s{sPI}, 2'); A(f's_sub_i32 s{sNB}, {NB0}, s62')
    A(f's_cmp_lt_i32 s{sNB}, 4'); A(f's_cselect_b32 s{sNB}, 0, s{sNB}')
    A(f's_sub_u32 s{sQT}, 15, s{sPI}')
    A(f's_lshl_b32 s{sB1}, s{sQT}, 2'); A(f's_add_u32 s{sB1}, s{sB1}, 4')
    A(f's_mov_b32 s{sWE}, s{sW}')
    A('s_cmp_ge_u32 s61, 8'); A('s_cbranch_scc1 k2_jobB')
    A(f's_mov_b32 s{sB0}, s{sNB}')
    A(f's_cmp_lg_u32 s{sNB}, 0'); A(f's_cselect_b32 s{sMODE}, 1, 0')
    A('s_branch k2_jobdone')
    A.label('k2_jobB')
    A(f's_mov_b32 s{sB0}, 0')
    A(f's_cmp_lg_u32 s{sNB}, 0'); A('s_cbranch_scc0 k2_jobB2')
    A(f's_mov_b32 s{sB1}, s{sNB}'); A(f's_mov_b32 s{sWE}, 99'); A(f's_mov_b32 s{sMODE}, 2')
    A('s_branch k2_jobdone')
    A.label('k2_jobB2')
    A(f's_mov_b32 s{sQT}, s{sPI}'); A(f's_lshl_b32 s{sB1}, s{sQT}, 2'); A(f's_add_u32 s{sB1}, s{sB1}, 4'); A(f's_mov_b32 s{sMODE}, 0')
    A.label('k2_jobdone')
    A(f's_mov_b32 s{sFL}, 0')
    A('s_waitcnt lgkmcnt(0)')
    ST.stamp(A)
    A(f's_lshl_b32 s60, s{sH}, 20')
    for sr_, base in ((S_K, WS_K), (S_V, WS_V), (S_Q, WS_Q)):
        A(f's_add_u32 s61, s60, {base}')
        A(f's_add_u32 s{sr_}, s{sWS}, s61'); A(f's_addc_u32 s{sr_+1}, s{sWS+1}, 0')
        A(f's_mov_b32 s{sr_+2}, 0x100000'); A(f's_mov_b32 s{sr_+3}, 0x00020000')
    A(f's_mul_i32 s61, s{sH}, {256*448*2}')
    A(f's_add_u32 s{S_WO}, s54, s61'); A(f's_addc_u32 s{S_WO+1}, s55, 0')
    A(f's_mov_b32 s{S_WO+2}, {256*448*2}'); A(f's_mov_b32 s{S_WO+3}, 0x00020000')
    A(f's_mul_i32 s61, s{sH}, {128*14336}'); A(f's_add_u32 s61, s61, {WS_PART}')
    A(f's_add_u32 s{S_P}, s{sWS}, s61'); A(f's_addc_u32 s{S_P+1}, s{sWS+1}, 0')
    A(f's_mov_b32 s{S_P+2}, {128*14336}'); A(f's_mov_b32 s{S_P+3}, 0x00020000')
    srd(A, S_DBG, 's66', 's67', 256)
    A(f's_lshl_b32 s61, s{sH}, 3'); A(f's_add_u32 s61, s61, s{sPI}'); A(f's_mul_i32 s61, s61, {4*17*1024}'); A(f's_add_u32 s61, s61, {WS_BO}')
    A(f's_add_u32 s{S_BO}, s{sWS}, s61'); A(f's_addc_u32 s{S_BO+1}, s{sWS+1}, 0')
    A(f's_mov_b32 s{S_BO+2}, {4*17*1024}'); A(f's_mov_b32 s{S_BO+3}, 0x00020000')
    A(f's_lshl_b32 s{sW4K}, s{sW}, 12')
    A(f's_mov_b32 s{sTHR}, {fbits(THR)}'); A(f's_mov_b32 s{sNEGINF}, 0xff800000')
    A(f'v_lshlrev_b32 v{vL16}, 4, v0')
    A(f'v_add_u32 v{vDK}, s{sW4K}, v{vL16}')
    A('v_and_b32 v28, 15, v0'); A('v_lshrrev_b32 v29, 4, v0')
    A(f'v_lshlrev_b32 v30, 2, v29'); A(f'v_sub_u32 v{vD}, v28, v30')
    A('v_lshrrev_b32 v31, 2, v28'); A('v_add_u32 v30, v30, v31')
    A('v_lshrrev_b32 v31, 1, v30'); A('v_and_b32 v31, 3, v31'); A('v_lshlrev_b32 v31, 5, v31')
    A('v_lshlrev_b32 v30, 7, v30'); A('v_and_b32 v28, 3, v28'); A('v_lshl_add_u32 v30, v28, 3, v30')
    for nb in range(4):
        A(f'v_xor_b32 v28, {nb << 5}, v31'); A(f'v_add_u32 v{vOA[nb]}, v30, v28'); A(f'v_add_u32 v{vOA[4+nb]}, 0x10000, v{vOA[nb]}')
    A('v_lshrrev_b32 v28, 3, v0'); A(f's_lshl_b32 s60, s{sW}, 6'); A('v_add_u32 v28, s60, v28')
    A('s_movk_i32 s60, 896'); A('v_mul_lo_u32 v28, v28, s60')
    A('v_lshrrev_b32 v29, 4, v0'); A('v_lshlrev_b32 v29, 1, v29'); A('v_and_b32 v30, 7, v0'); A('v_xor_b32 v29, v29, v30')
    A('v_lshl_add_u32 v28, v29, 4, v28')
    for b in range(4): A(f'v_add_u32 v{vDO[b]}, {6144*b}, v28')
    A(f's_mul_i32 s60, s{sW}, {17*1024}'); A(f'v_add_u32 v8, s60, v{vL16}')
    A(f's_lshl_b32 s60, s{sH}, 3'); A(f's_add_u32 s60, s60, s{sPI}'); A('v_mov_b32 v9, s60')
    A.label('k2_seg')
    A(f's_lshl_b32 s60, s{sQT}, 2'); A(f's_add_u32 s60, s60, s{sW}'); A('s_lshl_b32 s60, s60, 14')
    A(f'v_add_u32 v27, s60, v{vL16}')
    st = Stream(A)
    for f in range(16):
        if f % 4 == 0: A(f's_mov_b32 s61, {4096*(f//4)}')
        st.emit(Ins(f'buffer_load_dwordx4 {Q(f//2, f%2)}, v27, s[{S_Q}:{S_Q+3}], s61 offen offset:{1024*(f%4)}', vm='Q'))
    def pk(srd_, ring, d, tag):
        A(f's_add_u32 s60, s{sB0}, {d}'); A('s_lshl_b32 s61, s60, 14')
        A('s_and_b32 s62, s61, 0xc000'); A(f's_add_u32 s62, s62, s{sW4K}'); A(f's_add_u32 m0, s62, {ring}')
        A('s_nop 0')
        for k in range(4):
            st.emit(Ins(f'buffer_load_dwordx4 v{vDK}, s[{srd_}:{srd_+3}], s61 offen offset:{1024*k} lds', vm=tag))
    pk(S_K, 0, 0, 'K0'); pk(S_K, 0, 1, 'K1'); pk(S_V, 0x10000, 0, 'V0'); pk(S_K, 0, 2, 'K2'); pk(S_V, 0x10000, 1, 'V1'); pk(S_K, 0, 3, 'K3')
    A(f's_lshl_b32 s60, s{sQT}, 3'); A(f's_lshl_b32 s61, s{sW}, 1'); A('s_add_u32 s60, s60, s61'); A('s_mul_i32 s60, s60, 14336')
    A(f'v_add_u32 v{vST[0]}, s60, v{vL16}'); A(f'v_add_u32 v{vST[1]}, 14336, v{vST[0]}')
    for db in range(16):
        for qb in range(2):
            for k in range(4): A(f'v_mov_b32 {O(db, qb)[k]}, 0')
    A(f'v_mov_b32 v{vL[0]}, 0'); A(f'v_mov_b32 v{vL[1]}, 0')
    A(f's_lshl_b32 s{sA}, s{sB0}, 14'); A(f's_and_b32 s{sA}, s{sA}, 0xc000')
    A(f's_add_u32 s{sKOFF}, s{sB0}, 4'); A(f's_lshl_b32 s{sKOFF}, s{sKOFF}, 14')
    A(f's_add_u32 s{sVOFF}, s{sB0}, 2'); A(f's_lshl_b32 s{sVOFF}, s{sVOFF}, 14')
    A(f's_sub_u32 s{sNIT}, s{sB1}, s{sB0}'); A(f's_sub_u32 s{sNIT}, s{sNIT}, 4'); A(f's_lshr_b32 s{sNIT}, s{sNIT}, 1')
    st.wait_vm('K0'); A('s_barrier')
    A(f's_cmp_eq_u32 s{sFL}, 1'); A('s_cbranch_scc0 k2_nopub')
    A(f's_mov_b32 s{sFL}, 0')
    A(f's_cmp_eq_u32 s{sW}, 0'); A('s_cbranch_scc0 k2_nopub')
    A('v_mov_b32 v27, 1'); A('s_mov_b64 exec, 1')
    A(f'buffer_store_byte v27, v9, s[{S_DBG}:{S_DBG+3}], 0 offen sc1')
    A('s_mov_b64 exec, -1')
    A.label('k2_nopub')
    ST.stamp(A)
    A(f'v_add_u32 v{vKA}, s{sA}, v{vL16}')
    rd = lambda f: Ins(f'ds_read_b128 {RING[f % NF]}, v{vKA} offset:{1024*f}', lds=f'f{f}')
    for f in range(LA): st.emit(rd(f))
    mf = qk_mfmas(0, 'f', base=0, czero=True)
    fill = {g: [] for g in range(-1, 32)}
    for f in range(16):
        if f + LA < 16: fill[2*f].append(rd(f + LA))
    st.emit_all(gapfill(mf, fill))
    st.wait_vm('V0'); A('s_barrier')
    A(f's_cmp_eq_u32 s{sNIT}, 0'); A('s_cbranch_scc0 k2_nomask0')
    A(f's_cmp_eq_u32 s{sWE}, 0'); A('s_cbranch_scc0 k2_nomask0')
    A('s_nop 4')
    apply_mask(A, 0)
    A.label('k2_nomask0')
    A('s_nop 4')
    rowmax_update(A, 0, first=True)
    for x in book_start(0): A(x)
    emit_dma(st, dma_v())
    A(f's_cmp_eq_u32 s{sNIT}, 0'); A('s_cbranch_scc1 k2_tail_entry')
    emit_dma(st, dma_k())
    stm = Stream(A)
    for k in range(16, 16 + LA): stm.emit(frag_read(k, 0, 'c'))
    q_mid = list(stm.q)
    A('s_branch k2_mid')
    A.label('k2_tail_entry')
    stm2 = Stream(A)
    for k in range(16, 16 + LA): stm2.emit(frag_read(k, 0, 'c'))
    A('s_branch k2_tmid')
    qhead = [f'n{k}' for k in range(LA)]
    A.label('k2_loop')
    s0 = Stream(A, qhead)
    full_iter(s0, 0, 'k2_m0', mid_label='k2_mid')
    A('s_waitcnt vmcnt(12)'); A('s_barrier')
    full_iter(s0, 1, 'k2_m1')
    assert s0.q == qhead, s0.q
    A('s_waitcnt vmcnt(12)'); A('s_barrier')
    A(f's_sub_u32 s{sNIT}, s{sNIT}, 1'); A(f's_cmp_lg_u32 s{sNIT}, 0'); A('s_cbranch_scc1 k2_loop')
    ST.stamp(A)
    slow = [(0, 'k2_m0'), (1, 'k2_m1')]
    for tau in range(4):
        p = tau & 1
        lab = f'k2_t{tau}'
        A.label(lab)
        dv = tau < 2
        vm = [8, 4, 0, 0][tau]
        if tau > 0:
            A(f's_cmp_ge_u32 s{sWE}, {tau}'); A(f's_cbranch_scc0 {lab}_part')
        A(f's_cmp_eq_u32 s{sWE}, {tau}'); A(f's_cbranch_scc0 {lab}_nomask')
        A('s_nop 7')
        apply_mask(A, p)
        A.label(f'{lab}_nomask')
        s1 = Stream(A, qhead)
        full_iter(s1, p, lab, dv=dv, dk=False, mid_label=('k2_tmid' if tau == 0 else None))
        slow.append((p, lab))
        assert s1.q == qhead
        if tau > 0:
            A(f's_branch {lab}_done')
            A.label(f'{lab}_part')
            if dv:
                emit_dma(Stream(A), dma_v())
            A(f's_cmp_eq_u32 s{sWE}, {tau-1}'); A(f's_cbranch_scc0 {lab}_none')
            s2 = Stream(A, qhead)
            pv_only(s2, p)
            A.label(f'{lab}_none')
            for x in book_end(): A(x)
            A.label(f'{lab}_done')
        if tau == 2:
            A(f's_cmp_eq_u32 s{sMODE}, 1'); A('s_cbranch_scc0 k2_nopoll')
            A(f's_mov_b32 s60, 0')
            A.label('k2_poll')
            A(f'buffer_load_ubyte v27, v9, s[{S_DBG}:{S_DBG+3}], 0 offen sc1')
            A('s_waitcnt vmcnt(0)')
            A('v_readfirstlane_b32 s61, v27')
            A('s_add_u32 s60, s60, 1')
            A('s_cmp_lg_u32 s61, 0'); A('s_cbranch_scc1 k2_polled')
            A('s_sleep 8')
            A('s_cmp_lt_u32 s60, 0x40000'); A('s_cbranch_scc1 k2_poll')
            A.label('k2_polled')
            for f in range(17):
                if f % 4 == 0: A(f's_mov_b32 s61, {4096*(f//4)}')
                A(f'buffer_load_dwordx4 {BO(f)}, v8, s[{S_BO}:{S_BO+3}], s61 offen offset:{1024*(f % 4)} sc1')
            A('s_barrier')
            A('s_branch k2_t3')
            A.label('k2_nopoll')
        if tau < 3: A(f's_waitcnt vmcnt({vm})')
        A('s_barrier')
    A(f's_cmp_ge_u32 s{sWE}, 3'); A('s_cbranch_scc0 k2_fin')
    s3 = Stream(A, qhead)
    pv_only(s3, 0)
    A.label('k2_fin')
    A('s_waitcnt lgkmcnt(0)')
    A('s_barrier')
    ST.stamp(A)
    A('s_nop 7')
    for qb in range(2): xreduce(A, vL[qb], 'v_add_f32', vT[0])
    A(f's_cmp_eq_u32 s{sMODE}, 1'); A('s_cbranch_scc1 k2_merge')
    for qb in range(2): A(f'v_rcp_f32 v{vMX[qb]}, v{vL[qb]}')
    A('s_nop 0')
    for s in range(8):
        for qb in range(2):
            t0, t1 = O(2*s, qb), O(2*s+1, qb)
            for t in (t0, t1):
                for k in range(4): A(f'v_mul_f32 {t[k]}, {t[k]}, v{vMX[qb]}')
            A(f'v_cvt_pk_bf16_f32 {t0[0]}, {t0[0]}, {t0[1]}'); A(f'v_cvt_pk_bf16_f32 {t0[1]}, {t0[2]}, {t0[3]}')
            A(f'v_cvt_pk_bf16_f32 {t0[2]}, {t1[0]}, {t1[1]}'); A(f'v_cvt_pk_bf16_f32 {t0[3]}, {t1[2]}, {t1[3]}')
    A(f's_cmp_eq_u32 s{sMODE}, 2'); A('s_cbranch_scc0 k2_oproj')
    for f in range(16):
        if f % 4 == 0: A(f's_mov_b32 s61, {4096*(f//4)}')
        A(f'buffer_store_dwordx4 {O(2*(f//2), f % 2)}, v8, s[{S_BO}:{S_BO+3}], s61 offen offset:{1024*(f % 4)} sc1')
    A(f'v_mov_b32 v28, {NM(0)[0]}'); A(f'v_mov_b32 v29, v{vL[0]}'); A(f'v_mov_b32 v30, {NM(1)[0]}'); A(f'v_mov_b32 v31, v{vL[1]}')
    A('s_mov_b32 s61, 0x4000')
    A(f'buffer_store_dwordx4 v[28:31], v8, s[{S_BO}:{S_BO+3}], s61 offen sc1')
    A(f's_mov_b32 s{sFL}, 1')
    A(f's_mov_b32 s{sQT}, s{sPI}'); A(f's_mov_b32 s{sB0}, 0'); A(f's_lshl_b32 s{sB1}, s{sQT}, 2'); A(f's_add_u32 s{sB1}, s{sB1}, 4')
    A(f's_mov_b32 s{sWE}, s{sW}'); A(f's_mov_b32 s{sMODE}, 0')
    A('s_nop 1')
    A('s_branch k2_seg')
    A.label('k2_merge')
    A('s_waitcnt vmcnt(0)')
    for k in range(4): A(f'v_accvgpr_read_b32 v{28+k}, {BO(16)[k]}')
    a_ = [216, 217]; b_ = [218, 219]
    for qb in range(2):
        nmB, lB = 28 + 2*qb, 29 + 2*qb
        A(f'v_min_f32 v27, {NM(qb)[0]}, v{nmB}')
        A(f'v_sub_f32 v{a_[qb]}, v27, {NM(qb)[0]}')
        A(f'v_sub_f32 v{b_[qb]}, v27, v{nmB}')
        A(f'v_exp_f32 v{a_[qb]}, v{a_[qb]}'); A(f'v_exp_f32 v{b_[qb]}, v{b_[qb]}')
        A('s_nop 0')
        A(f'v_mul_f32 v{b_[qb]}, v{b_[qb]}, v{lB}')
        A(f'v_fma_f32 v27, v{vL[qb]}, v{a_[qb]}, v{b_[qb]}')
        A('v_rcp_f32 v27, v27'); A('s_nop 0')
        A(f'v_mul_f32 v{a_[qb]}, v{a_[qb]}, v27'); A(f'v_mul_f32 v{b_[qb]}, v{b_[qb]}, v27')
    A('s_mov_b32 s61, 0xffff0000')
    for s in range(8):
        for qb in range(2):
            t0, t1 = O(2*s, qb), O(2*s+1, qb)
            f = 2*s + qb
            for k in range(4): A(f'v_accvgpr_read_b32 v{220+k}, {BO(f)[k]}')
            els = [t0[0], t0[1], t0[2], t0[3], t1[0], t1[1], t1[2], t1[3]]
            for k in range(4):
                A(f'v_lshlrev_b32 v{224+2*k}, 16, v{220+k}'); A(f'v_and_b32 v{225+2*k}, s61, v{220+k}')
            for k in range(8): A(f'v_mul_f32 v{224+k}, v{224+k}, v{b_[qb]}')
            for k in range(8): A(f'v_fma_f32 {els[k]}, {els[k]}, v{a_[qb]}, v{224+k}')
            A(f'v_cvt_pk_bf16_f32 {t0[0]}, {t0[0]}, {t0[1]}'); A(f'v_cvt_pk_bf16_f32 {t0[1]}, {t0[2]}, {t0[3]}')
            A(f'v_cvt_pk_bf16_f32 {t0[2]}, {t1[0]}, {t1[1]}'); A(f'v_cvt_pk_bf16_f32 {t0[3]}, {t1[2]}, {t1[3]}')
    A.label('k2_oproj')
    ST.stamp(A)
    oproj(A)
    ST.stamp(A)
    if stamps:
        A('s_waitcnt vmcnt(0)'); ST.stamp(A)
    ST.dump(A, f's{sWS}', f's{sWS+1}', sW, 'k2_dumpend')
    A('s_branch k2_end')
    for p, lab in slow: slow_path(A, p, lab)
    A.label('k2_end')
    A('s_endpgm')

if __name__ == '__main__':
    import sys
    A = Asm()
    A('; @launch kernel=k2_kernel grid=(256,1,1) block=(256,1,1) lds=131072')
    A('.amdgcn_target "amdgcn-amd-amdhsa--gfx950"')
    gen_k2(A, stamps=('stamp' in sys.argv))
    kernel_desc(A, 'k2_kernel')
    open('k2.s', 'w').write(A.text())
    v = check_hazards(A.lines, 'k2')
    print(len(v), 'hazard reports;', len(A.lines), 'lines')
```

```python
import re

class Asm:
    def __init__(self):
        self.lines = []
    def __call__(self, s):
        for l in s.split('\n'):
            l = l.rstrip()
            if l.strip():
                self.lines.append(l)
    def label(self, name):
        self.lines.append(name + ':')
    def extend(self, lst):
        for l in lst:
            self(l)
    def text(self):
        out = []
        for l in self.lines:
            s = l.strip()
            if s.endswith(':') or s.startswith('.') or s.startswith(';'):
                out.append(s)
            else:
                out.append('  ' + s)
        return '\n'.join(out) + '\n'

def vr(base, n=1):
    return f'v{base}' if n == 1 else f'v[{base}:{base+n-1}]'
def ar(base, n=1):
    return f'a{base}' if n == 1 else f'a[{base}:{base+n-1}]'
def sr(base, n=1):
    return f's{base}' if n == 1 else f's[{base}:{base+n-1}]'

class R:
    def __init__(self, kind, base, n=1):
        self.kind, self.base, self.n = kind, base, n
    def __str__(self):
        if self.n == 1:
            return f'{self.kind}{self.base}'
        return f'{self.kind}[{self.base}:{self.base+self.n-1}]'
    def sub(self, off, n=1):
        assert off + n <= self.n, (off, n, self.n)
        return R(self.kind, self.base + off, n)
    def __getitem__(self, i):
        return self.sub(i, 1)

def interleave(main, fillers, start=0, per_gap=None):
    n = len(main) - start
    out = []
    k = 0
    nf = len(fillers)
    for i, m in enumerate(main):
        out.append(m)
        if i >= start:
            j = i - start + 1
            tgt = (nf * j + n - 1) // n if per_gap is None else min(nf, per_gap * j)
            while k < tgt:
                f = fillers[k]
                if isinstance(f, (list, tuple)):
                    out.extend(f)
                else:
                    out.append(f)
                k += 1
    while k < nf:
        f = fillers[k]
        if isinstance(f, (list, tuple)):
            out.extend(f)
        else:
            out.append(f)
        k += 1
    return out

def place(main, slots):
    out = []
    out.extend(slots.get(-1, []))
    for i, m in enumerate(main):
        out.append(m)
        out.extend(slots.get(i, []))
    return out

_reg_re = re.compile(r'\b([vas])\[(\d+):(\d+)\]|\b([vas])(\d+)\b|\b(vcc|exec|m0|scc)\b')

def regs_of(tok):
    out = []
    for m in _reg_re.finditer(tok):
        if m.group(1):
            out += [(m.group(1), i) for i in range(int(m.group(2)), int(m.group(3)) + 1)]
        elif m.group(4):
            out.append((m.group(4), int(m.group(5))))
        else:
            out.append((m.group(6), 0))
    return out

TRANS = ('v_exp_f32', 'v_log_f32', 'v_rcp_f32', 'v_rsq_f32', 'v_sqrt_f32', 'v_sin_f32', 'v_cos_f32')

def parse(line):
    s = line.split(';')[0].strip()
    if not s or s.endswith(':') or s.startswith('.'):
        return None
    parts = s.split(None, 1)
    op = parts[0]
    ops = [x.strip() for x in parts[1].split(',')] if len(parts) > 1 else []
    d = dict(op=op, text=s, ops=ops)
    base = re.sub(r'_e(32|64)$', '', op)
    d['base'] = base
    if op.startswith('v_mfma'):
        d['cls'] = 'mfma'
        d['passes'] = 8 if '32x32x16' in op else (4 if '16x16x32' in op else 16)
        d['dst'] = regs_of(ops[0]); d['a'] = regs_of(ops[1]); d['b'] = regs_of(ops[2]); d['c'] = regs_of(ops[3])
        d['src'] = d['a'] + d['b'] + d['c']
    elif op.startswith('v_'):
        d['cls'] = 'valu'
        d['trans'] = base in TRANS
        if base.startswith('v_cmp'):
            d['dst'] = regs_of(ops[0]); d['src'] = sum([regs_of(o) for o in ops[1:]], [])
        elif base in ('v_permlane32_swap_b32', 'v_permlane16_swap_b32', 'v_swap_b32'):
            d['dst'] = regs_of(ops[0]) + regs_of(ops[1]); d['src'] = list(d['dst'])
        elif base in ('v_add_co_u32', 'v_addc_co_u32', 'v_sub_co_u32'):
            d['dst'] = regs_of(ops[0]) + regs_of(ops[1]); d['src'] = sum([regs_of(o) for o in ops[2:]], [])
        else:
            d['dst'] = regs_of(ops[0]); d['src'] = sum([regs_of(o) for o in ops[1:]], [])
            if base.startswith('v_fmac') or base.startswith('v_dot2c') or base in ('v_pk_fmac_f16',):
                d['src'] += d['dst']
            if base == 'v_cndmask_b32' and len(ops) == 3:
                d['src'].append(('vcc', 0))
            if base == 'v_writelane_b32':
                d['src'] += d['dst']
    elif op.startswith('ds_'):
        d['cls'] = 'ds'
        if op.startswith('ds_read') or op.startswith('ds_bpermute') or op.startswith('ds_swizzle') or op.startswith('ds_permute'):
            d['dst'] = regs_of(ops[0]); d['src'] = sum([regs_of(o) for o in ops[1:]], [])
        else:
            d['dst'] = []; d['src'] = sum([regs_of(o) for o in ops], [])
    elif op.startswith('buffer_') or op.startswith('global_'):
        d['cls'] = 'vmem'
        islds = ' lds' in s
        d['lds'] = islds
        if 'load' in op and not islds:
            d['dst'] = regs_of(ops[0]); d['src'] = sum([regs_of(o) for o in ops[1:]], [])
        elif 'atomic' in op and (' sc0' in s):
            d['dst'] = regs_of(ops[0]) if op.startswith('buffer_') else regs_of(ops[0])
            d['src'] = sum([regs_of(o) for o in ops], [])
        else:
            d['dst'] = []; d['src'] = sum([regs_of(o) for o in ops], [])
        d['store'] = 'store' in op
        d['wide'] = ('x4' in op or 'x3' in op)
        if d['store']:
            d['data'] = regs_of(ops[0]) if op.startswith('buffer_') else regs_of(ops[1])
    elif op.startswith('s_'):
        d['cls'] = 'salu'
        if op in ('s_nop', 's_waitcnt', 's_barrier', 's_endpgm', 's_setprio', 's_sleep') or op.startswith('s_cbranch') or op == 's_branch':
            d['dst'] = []; d['src'] = []
        elif op.startswith('s_cmp') or op.startswith('s_bitcmp'):
            d['dst'] = []; d['src'] = sum([regs_of(o) for o in ops], [])
        else:
            d['dst'] = regs_of(ops[0]) if ops else []
            d['src'] = sum([regs_of(o) for o in ops[1:]], [])
            if 'saveexec' in op:
                d['dst'] = d['dst'] + [('exec', 0)]
    else:
        raise ValueError('cannot parse ' + line)
    return d

def check_hazards(lines, name='', verbose=True):
    ins = [p for p in (parse(l) for l in lines) if p is not None]
    viol = []
    n = len(ins)
    ws = []
    acc = 0
    for d in ins:
        ws.append(acc)
        if d['op'] == 's_nop':
            acc += int(d['ops'][0], 0) + 1
        else:
            acc += 1
    def dist(i, j):
        return ws[j] - ws[i] - 1
    lastw = {}
    lastCread = {}
    laststore = {}
    def V(i, j, need, why):
        if dist(i, j) < need:
            viol.append(f'{name}: need {need} got {dist(i,j)}: {why}\n    [{i}] {ins[i]["text"]}\n    [{j}] {ins[j]["text"]}')
    for j, d in enumerate(ins):
        cls = d['cls']
        src = d.get('src', []); dst = d.get('dst', [])
        for r in set(src):
            if r not in lastw: continue
            i = lastw[r]; p = ins[i]
            if p['cls'] == 'mfma':
                P = p['passes']
                if cls == 'mfma':
                    if r in d['c'] and r not in d['a'] and r not in d['b']:
                        if p['dst'] == d['c'] and p['passes'] == d['passes']:
                            if P == 2: V(i, j, 2, 'mfma D->C')
                        else:
                            V(i, j, {2:4,4:6,8:10,16:18}[P], 'mfma D->C partial overlap')
                    else:
                        V(i, j, {2:5,4:8,8:12,16:20}[P], 'mfma D->A/B')
                elif cls in ('valu', 'vmem', 'ds'):
                    V(i, j, {2:5,4:8,8:12,16:20}[P], 'mfma D->VALU/mem read')
            elif p['cls'] == 'valu':
                if cls == 'mfma' and r[0] in 'va':
                    V(i, j, 2, 'VALU->MFMA')
                if r[0] in ('s', 'vcc'):
                    if cls == 'vmem': V(i, j, 5, 'VALU sgpr->VMEM')
                    elif cls == 'valu':
                        if d['base'] in ('v_readlane_b32', 'v_writelane_b32') :
                            V(i, j, 4, 'VALU sgpr->lane select')
                        else:
                            V(i, j, 2, 'VALU sgpr/vcc->VALU const')
                if r[0] == 'exec' and cls == 'valu' and ('dpp' in d['text'] or 'row_' in d['text']):
                    V(i, j, 5, 'exec->dpp')
                if r[0] in 'va' and cls == 'valu':
                    if p.get('trans') and not d.get('trans'):
                        V(i, j, 1, 'trans->VALU')
                    if d['base'] in ('v_readlane_b32', 'v_readfirstlane_b32'):
                        V(i, j, 1, 'VALU->readlane')
                    if d['base'].startswith('v_permlane'):
                        V(i, j, 2, 'VALU->permlane')
                    if 'row_' in d['text'] or 'quad_perm' in d['text'] or ' dpp' in d['text']:
                        V(i, j, 2, 'VALU->DPP')
                    if ('op_sel' in p['text'] or 'sdwa' in p['text']):
                        V(i, j, 1, 'opsel->VALU')
            elif p['cls'] == 'salu':
                if r[0] == 'm0' and cls == 'vmem' and d.get('lds'):
                    V(i, j, 1, 'm0->lds dma')
        if cls == 'vmem' and d.get('lds') and ('m0', 0) in lastw:
            i = lastw[('m0', 0)]
            if ins[i]['cls'] == 'salu': V(i, j, 1, 'm0->lds dma')
        if cls == 'mfma' and ('exec', 0) in lastw:
            i = lastw[('exec', 0)]
            if ins[i]['cls'] == 'valu': V(i, j, 4, 'valu exec->mfma')
        for r in set(dst):
            if r in lastw:
                i = lastw[r]; p = ins[i]
                if p['cls'] == 'mfma':
                    P = p['passes']
                    if cls in ('valu', 'vmem', 'ds'):
                        V(i, j, {2:5,4:8,8:12,16:20}[P], 'mfma D->VALU/load write (WAW)')
                    elif cls == 'mfma' and not (r in d['c']):
                        V(i, j, {2:4,4:6,8:10,16:18}[P], 'mfma D->mfma D (WAW, no chain)')
            if r in lastCread and cls == 'valu':
                i = lastCread[r]
                V(i, j, {2:1,4:3,8:7,16:15}[ins[i]['passes']], 'mfma C read -> VALU write (WAR)')
            if r in laststore and cls in ('valu', 'mfma', 'ds', 'vmem'):
                i = laststore[r]
                V(i, j, 2 if cls == 'valu' else 1, 'wide store data WAR')
        for r in dst:
            lastw[r] = j
        if cls == 'mfma':
            for r in d['c']:
                lastCread[r] = j
        if cls == 'vmem' and d.get('store') and d.get('wide'):
            for r in d['data']:
                laststore[r] = j
    if verbose:
        for v in viol[:8]: print(v)
    return viol

class Ins:
    __slots__ = ('t', 'lds', 'need', 'vm', 'vneed')
    def __init__(self, t, lds=None, need=(), vm=None, vneed=()):
        self.t = t; self.lds = lds; self.need = tuple(need); self.vm = vm; self.vneed = tuple(vneed)

class Stream:
    def __init__(self, A, q=None, vq=None):
        self.A = A
        self.q = list(q or [])
        self.vq = list(vq or [])
    def wait_vm(self, *tags):
        idx = -1
        for k, x in enumerate(self.vq):
            if x in tags: idx = k
        if idx >= 0:
            n = len(self.vq) - 1 - idx
            assert n <= 63
            self.A(f's_waitcnt vmcnt({n})')
            self.vq = self.vq[idx + 1:]
    def emit(self, ins):
        if isinstance(ins, str):
            ins = Ins(ins)
        if ins.need:
            idx = -1
            for t in ins.need:
                for k, x in enumerate(self.q):
                    if x == t and k > idx:
                        idx = k
            if idx >= 0:
                n = len(self.q) - 1 - idx
                assert n <= 15, ('lgkmcnt overflow', n)
                self.A(f's_waitcnt lgkmcnt({n})')
                self.q = self.q[idx + 1:]
        self.A(ins.t)
        if ins.lds is not None:
            self.q.append(ins.lds)
        if ins.vm is not None:
            self.vq.append(ins.vm)
            assert len(self.vq) <= 63, 'vmcnt overflow'
    def emit_all(self, lst):
        for x in lst:
            self.emit(x)
    def drain(self):
        if self.q:
            self.A('s_waitcnt lgkmcnt(0)')
        self.q = []

def gapfill(mfmas, fillers):
    out = list(fillers.get(-1, []))
    for i, m in enumerate(mfmas):
        out.append(m)
        out.extend(fillers.get(i, []))
    return out

def kernel_header(A, name):
    A('.text'); A(f'.globl {name}'); A('.p2align 8'); A(f'.type {name},@function'); A.label(name)

def kernel_desc(A, name, nvgpr=512, accum=256, nsgpr=102):
    A('.section .rodata,"a"'); A('.p2align 6'); A(f'.amdhsa_kernel {name}')
    A(f'.amdhsa_next_free_vgpr {nvgpr}'); A(f'.amdhsa_next_free_sgpr {nsgpr}'); A(f'.amdhsa_accum_offset {accum}')
    A('.amdhsa_group_segment_fixed_size 0'); A('.amdhsa_kernarg_size 104'); A('.amdhsa_user_sgpr_count 2')
    A('.amdhsa_user_sgpr_kernarg_segment_ptr 1'); A('.amdhsa_system_sgpr_workgroup_id_x 1'); A('.end_amdhsa_kernel')

def mfma16(d, a, b, c, need=()):
    return Ins(f'v_mfma_f32_16x16x32_bf16 {d}, {a}, {b}, {c}', need=need)

def srd(A, s, ptr_lo, ptr_hi, size, add=0):
    if add:
        A(f's_add_u32 s{s}, {ptr_lo}, {add}')
        A(f's_addc_u32 s{s+1}, {ptr_hi}, 0')
    else:
        A(f's_mov_b32 s{s}, {ptr_lo}')
        A(f's_mov_b32 s{s+1}, {ptr_hi}')
    A(f's_mov_b32 s{s+2}, {size}')
    A(f's_mov_b32 s{s+3}, 0x00020000')

WS_K    = 0
WS_V    = 16 << 20
WS_Q    = 32 << 20
WS_PART = 48 << 20
WS_BO   = 80 << 20
WS_ST   = 96 << 20
WS_FLAG = 97 << 20
WS_H    = 100 << 20
WS_HN   = 104 << 20
WS_HID  = 108 << 20
WS_XN   = 116 << 20


class Stamps:
    def __init__(self, enabled, base=72, only=None):
        self.on = enabled; self.base = base; self.n = 0; self.keys = []; self.only = only
    def stamp(self, A, key=None):
        if not self.on: return
        if key is None: key = f'auto{len(self.keys)}'
        if self.only is not None and key not in self.only: return
        if key not in self.keys: self.keys.append(key)
        i = self.keys.index(key)
        b = self.base; c = b + 4 + 2*i
        assert c + 1 < 96, 'too many stamps'
        A(f's_memrealtime s[{b}:{b+1}]'); A(f's_memtime s[{b+2}:{b+3}]'); A('s_waitcnt lgkmcnt(0)')
        A(f's_mov_b32 s{c}, s{b}'); A(f's_mov_b32 s{c+1}, s{b+2}')
        self.n = len(self.keys)
    def dump(self, A, ws_lo, ws_hi, wave_sgpr, label):
        if not self.on: return
        A(f's_cmp_lg_u32 s{wave_sgpr}, 0'); A(f's_cbranch_scc1 {label}')
        A(f's_add_u32 s4, {ws_lo}, 0xC000000'); A(f's_addc_u32 s5, {ws_hi}, 0')
        A('s_mov_b32 s6, 0x100000'); A('s_mov_b32 s7, 0x00020000')
        A('s_lshl_b32 s8, s2, 7'); A('v_mov_b32 v2, s8')
        A('s_mov_b64 exec, 1')
        for i in range(self.n):
            b = self.base + 4 + 2*i
            A(f'v_mov_b32 v4, s{b}'); A(f'v_mov_b32 v5, s{b+1}')
            A(f'buffer_store_dwordx2 v[4:5], v2, s[4:7], 0 offen offset:{8*i}')
            A('s_nop 1')
        A.label(label)


def lane_stamp(A, vreg, slot_sgpr):
    A('s_memtime s[96:97]'); A('s_memrealtime s[98:99]'); A('s_waitcnt lgkmcnt(0)')
    A(f's_mov_b32 m0, s{slot_sgpr}'); A('s_nop 3')
    A(f'v_writelane_b32 v{vreg}, s96, m0')
    A(f's_add_u32 m0, s{slot_sgpr}, 32'); A('s_nop 3')
    A(f'v_writelane_b32 v{vreg}, s98, m0')
    A(f's_add_u32 s{slot_sgpr}, s{slot_sgpr}, 1')
def lane_dump(A, vreg, ws_lo, ws_hi, wave_sgpr, label):
    A(f's_cmp_lg_u32 s{wave_sgpr}, 0'); A(f's_cbranch_scc1 {label}')
    A(f's_add_u32 s4, {ws_lo}, 0xC200000'); A(f's_addc_u32 s5, {ws_hi}, 0')
    A('s_mov_b32 s6, 0x100000'); A('s_mov_b32 s7, 0x00020000')
    A('v_mbcnt_lo_u32_b32 v2, -1, 0'); A('v_mbcnt_hi_u32_b32 v2, -1, v2'); A('v_lshlrev_b32 v2, 2, v2')
    A('s_lshl_b32 s8, s2, 8'); A('v_add_u32 v2, s8, v2')
    A(f'buffer_store_dword v{vreg}, v2, s[4:7], 0 offen')
    A.label(label)


F_KV, F_Q, F_M, F_P, F_H, F_D = 0, 2048, 4096, 6144, 8192, 10240
FLAG_BYTES = 16384
def flag_srd(A, s, ws_lo, ws_hi):
    srd(A, s, ws_lo, ws_hi, FLAG_BYTES, add=WS_FLAG)
def poll(A, lab, srdf, vaddr, vtmp, stmp, limit=0x40000):
    A(f's_mov_b32 s{stmp}, 0')
    A.label(lab)
    A(f'buffer_load_dword v{vtmp}, v{vaddr}, s[{srdf}:{srdf+3}], 0 offen sc1')
    A('s_waitcnt vmcnt(0)')
    A(f'v_cmp_ne_u32 vcc, 1, v{vtmp}')
    A(f's_add_u32 s{stmp}, s{stmp}, 1')
    A(f's_cbranch_vccz {lab}_ok')
    A(f's_cmp_lt_u32 s{stmp}, {limit}'); A(f's_cbranch_scc0 {lab}_ok')
    A('s_sleep 2')
    A(f's_branch {lab}')
    A.label(f'{lab}_ok')
def set_flag(A, lab, srdf, wave_sgpr, soff_sgpr, v0, v1):
    A(f's_cmp_eq_u32 s{wave_sgpr}, 0'); A(f's_cbranch_scc0 {lab}')
    A('s_mov_b64 exec, 1'); A(f'v_mov_b32 v{v0}, 1'); A(f'v_mov_b32 v{v1}, s{soff_sgpr}')
    A(f'buffer_store_dword v{v0}, v{v1}, s[{srdf}:{srdf+3}], 0 offen sc1')
    A('s_mov_b64 exec, -1')
    A.label(lab)
```

```python
from asmlib import *

LOG2E = 1.4426950408889634
import struct
def fbits(x): return '0x%08x' % struct.unpack('<I', struct.pack('<f', x))[0]

S_C, S_W, S_WQ, S_X, S_OUT, S_Q = 4, 8, 12, 16, 20, 24
sW, sWR, sWC = 28, 29, 30
sKIND = 31
sCRD, sCWR, sCOFF = 32, 33, 34
sWOFF = 35
sWB = 48
sCB = 49
sIT = 50; sOOB = 69
sT0, sT1, sT2, sT3 = 52, 53, 54, 55
sTMP = 56
sW4K = 58; sWQO = 59; sPQA = 51; sXFL = 70; sXRD = 71; sSIG = 61; sJOB = 97; sFKV = 96
S_DBG = 36; S_XRAW = 40
vLANE16 = 1
vCL = [2, 3]; vCA = 4
vWA = list(range(5, 13))
vDC = list(range(13, 17)); vDW = list(range(17, 21))
vST = [21, 22]
vXO = [30, 31]; vPF = 29; vPQ = 28
vT = list(range(23, 32))
ACCV = 32
def pair_regs(pi, second):
    if not second: return R('v', ACCV + 4*pi, 4)
    return R('v', 160 + 4*pi, 4) if pi < 24 else R('a', 4*(pi-24), 4)
def kv_tile(kind, tb, db):
    if kind == 'K': return pair_regs((db >> 1)*8 + tb, db & 1)
    return pair_regs(db*4 + (tb >> 1), tb & 1)
CF = [[R('a', 32 + p*32 + 4*tb, 4) for tb in range(8)] for p in range(2)]
WR = [R('a', 96 + 4*i, 4) for i in range(4)]
XN = [[R('a', 112 + (qb*14 + s)*4, 4) for s in range(14)] for qb in range(2)]
WBASE = 98304

def w_dma(srdw, slot, soff):
    l = [f's_add_u32 m0, s{sWB}, {slot*16384}']
    l += [f'buffer_load_dwordx4 v{vDW[j]}, s[{srdw}:{srdw+3}], {soff} offen offset:{1024*j} lds' for j in range(4)]
    return l
def c_dma(hf):
    l = [f's_add_u32 m0, s{sCWR}, {4096*hf}' ]
    l += [f'buffer_load_dwordx4 v{vDC[j]}, s[{S_C}:{S_C+3}], s{sTMP+hf} offen offset:{1024*j} lds' for j in range(4)]
    return l

def w_read(dst, db, slot, tag):
    return [Ins(f'ds_read_b64_tr_b16 {dst.sub(0,2)}, v{vWA[db & 7]} offset:{slot*16384 + (db >> 3)*256}', lds=tag + 'a'),
            Ins(f'ds_read_b64_tr_b16 {dst.sub(2,2)}, v{vWA[db & 7]} offset:{slot*16384 + (db >> 3)*256 + 2048}', lds=tag + 'b')]

def kv_kstep(st, kind, t, first=False, wsrc=None, cdma=True, nextc=True, nextw=True, vm=12, extra=None, waits=None, wtag=None, pf=False):
    A = st.A
    p = t & 1
    fill = {g: [] for g in range(-1, 64)}
    if t & 1:
        fill[-1] += [f's_add_u32 s{sCWR}, s{sCRD}, s{sCB}',
                     f's_add_u32 s{sCRD}, s{sCRD}, 0x8000',
                     f's_cmp_eq_u32 s{sCRD}, 0x18000',
                     f's_cselect_b32 s{sCRD}, 0, s{sCRD}',
                     f's_add_u32 s{sCOFF}, s{sCOFF}, 128',
                     f's_mov_b32 s{sTMP}, s{sCOFF}',
                     f's_add_u32 s{sTMP+1}, s{sCOFF}, 0x10000']
    if nextc:
        fill[-1].append(f'v_add_u32 v{vCA}, s{sCRD}, v{vCL[(t+1) & 1]}')
    mf = []
    for db in range(8):
        w = WR[db % 4]
        for tb in range(8):
            d = kv_tile(kind, tb, db)
            c = '0' if first else d
            need = (f'W{t}_{db}a', f'W{t}_{db}b') if tb == 0 else ()
            if db == 0: need = need + (f'C{t}_{tb}',)
            if kind == 'K': mf.append(mfma16(d, w, CF[p][tb], c, need))
            else:           mf.append(mfma16(d, CF[p][tb], w, c, need))
        g = db*8
        nd = db + 2
        if nd < 8:
            r = w_read(WR[nd % 4], nd, t % 4, f'W{t}_{nd}')
            fill[g] .append(r[0]); fill[g+1].append(r[1])
        elif nextw:
            r = w_read(WR[nd % 4], nd - 8, (t+1) % 4, f'W{(t+1)%4}_{nd-8}')
            fill[g].append(r[0]); fill[g+1].append(r[1])
        if nextc and db < 4:
            for k in range(2):
                tb = 2*db + k
                fill[g+2+k].append(Ins(f'ds_read_b128 {CF[1-p][tb]}, v{vCA} offset:{2048*tb}', lds=f'C{(t+1)%4}_{tb}'))
    if wsrc is not None:
        l = w_dma(wsrc[0], (t+3) % 4, wsrc[1])
        fill[30].append(l[0])
        for j in range(4): fill[34 + 3*j].append(Ins(l[1+j], vm=wtag))
        fill[45].append(f's_add_u32 {wsrc[1]}, {wsrc[1]}, 0x40000')
    if cdma:
        hf = 0 if (t & 1) else 1
        l = c_dma(hf)
        fill[46].append(l[0])
        for j in range(4): fill[49 + 3*j].append(l[1+j])
    if pf:
        if t == 0:
            fill[62].append(f'buffer_load_dword a254, v{vPQ}, s[{S_WQ}:{S_WQ+3}], s{sPQA} offen')
    if extra:
        gaps = list(range(46, 64)) + list(range(3, 30))
        flat = [x for g in extra for x in g]
        order = sorted(range(len(flat)), key=lambda n: n)
        gs = list(range(3, 30, 1)) + list(range(46, 63))
        n = len(flat); per = max(1, -(-n // len(gs)))
        k = 0
        for g in gs:
            for _ in range(per):
                if k < n: fill[g].append(flat[k]); k += 1
        assert k == n
    st.emit_all(gapfill(mf, fill))
    if waits is not None:
        for w in waits: st.wait_vm(w)
    else:
        A(f's_waitcnt vmcnt({vm})')
    A('s_barrier')
    if LSTAMP: lane_stamp(A, 0, 101)

_c = lambda slot, half: 32768*slot + 16384*half
_w = lambda slot: WBASE + 16384*slot
QSLOT = [_c(1, 0), _c(1, 1), _c(2, 0), _c(2, 1), _w(0), _w(1), _w(2), _w(3), _c(0, 0), _c(0, 1), _c(1, 0), _c(1, 1), _c(2, 0), _c(2, 1)]
QWIN = [a & ~0xffff for a in QSLOT]
def wq_dma(tau, srdw=S_WQ, rowbytes=8192):
    l = [f's_add_u32 m0, s{sW4K}, {QSLOT[tau]}', f's_mov_b32 s{sWQO}, {tau*32*rowbytes}']
    l += [Ins(f'buffer_load_dwordx4 v{vDW[j]}, s[{srdw}:{srdw+3}], s{sWQO} offen offset:{1024*j} lds', vm=f'q{tau}') for j in range(4)]
    return l
def xn_loads():
    l = []
    for n in range(28):
        qb, s_ = divmod(n, 14)
        l.append(f's_mov_b32 s{sWQO}, {1024*(s_ & ~3)}')
        l.append(Ins(f'buffer_load_dwordx4 {XN[qb][s_]}, v{vXO[qb]}, s[{S_X}:{S_X+3}], s{sWQO} offen offset:{1024*(s_ & 3)} sc1', vm=f'x{s_}'))
    return [l[2*n:2*n+2] for n in range(28)]

def qk_tile(db, qb):
    n = db*2 + qb
    return R('v', 160 + 4*n, 4) if n < 24 else R('a', 4*(n-24), 4)

def kv_signal(A, L, s_, st_):
    if s_ == 11:
        st_.wait_vm('st'); A('s_barrier')
        set_flag(A, f'{L}_kvflag', S_XRAW, sW, sFKV, 24, 25)

def kv_path(A, kind):
    L = f'k1_{kind}'
    A.label(L)
    st = Stream(A)
    A(f'v_add_u32 v{vCA}, s{sCRD}, v{vCL[0]}')
    for tb in range(8):
        st.emit(Ins(f'ds_read_b128 {CF[0][tb]}, v{vCA} offset:{2048*tb}', lds=f'C0_{tb}'))
    for db in range(2):
        st.emit_all(w_read(WR[db], db, 0, f'W0_{db}'))
    q0 = list(st.q)
    sw = f's{sWOFF}'
    A(f's_mov_b32 s{sPQA}, s{sOOB}')
    for t in range(4):
        kv_kstep(st, kind, t, first=(t == 0), wsrc=(S_W, sw), pf=True, vm=[16, 13, 12, 12][t])
    qs = list(st.q)
    A(f's_mov_b32 s{sIT}, 6'); A('v_and_b32 v23, 15, v0'); A('v_lshlrev_b32 v23, 4, v23')
    A.label(L + '_loop')
    st2 = Stream(A, qs)
    A(f's_cmp_eq_u32 s{sIT}, 2'); A(f's_cselect_b32 s{sPQA}, 0, s{sOOB}')
    A(f's_cmp_eq_u32 s{sIT}, s{sSIG}'); A(f's_cbranch_scc0 {L}_nosig')
    A(f's_cmp_eq_u32 s{sW}, 0'); A(f's_cbranch_scc0 {L}_nosig')
    A('s_mov_b64 exec, 1'); A(f'v_mov_b32 v24, 1'); A(f'v_mov_b32 v25, s{sXFL}')
    A(f'buffer_store_byte v24, v25, s[{S_DBG}:{S_DBG+3}], 0 offen sc1')
    A('s_mov_b64 exec, -1')
    A.label(f'{L}_nosig')
    A(f's_cmp_eq_u32 s{sIT}, 1'); A(f's_cbranch_scc0 {L}_nofl')
    A(f'buffer_load_dwordx4 v[24:27], v23, s[{S_DBG}:{S_DBG+3}], 0 offen sc1')
    A.label(f'{L}_nofl')
    for t in range(4):
        kv_kstep(st2, kind, t, wsrc=(S_W, sw), pf=True, vm=[13, 13, 12, 12][t])
    assert st2.q == qs, (st2.q, qs)
    A(f's_sub_u32 s{sIT}, s{sIT}, 1')
    A(f's_cmp_lg_u32 s{sIT}, 0')
    A(f's_cbranch_scc1 {L}_loop')
    A('s_mov_b32 s68, 0')
    A.label(f'{L}_poll')
    A('v_and_b32 v24, v24, v25'); A('v_and_b32 v26, v26, v27'); A('v_and_b32 v24, v24, v26')
    A('v_cmp_ne_u32 vcc, 0x01010101, v24'); A('s_add_u32 s68, s68, 1')
    A(f's_cbranch_vccz {L}_ok')
    A('s_cmp_lt_u32 s68, 0x40000'); A(f's_cbranch_scc0 {L}_ok')
    A('s_sleep 4')
    A(f'buffer_load_dwordx4 v[24:27], v23, s[{S_DBG}:{S_DBG+3}], 0 offen sc1')
    A('s_waitcnt vmcnt(0)')
    A(f's_branch {L}_poll')
    A.label(f'{L}_ok')
    st3 = Stream(A, qs, ['c']*4 + ['W30']*4 + ['c']*4)
    xl = xn_loads()
    X = lambda a, b: sum(xl[a:b], [])
    xo = [0, 14, 1, 15, 2, 16, 3, 17, 4, 18, 5, 19, 6, 20, 7, 21, 8, 22, 9, 23, 10, 24, 11, 25, 12, 26, 13, 27]
    xl = [xl[n] for n in xo]
    kv_kstep(st3, kind, 0, wsrc=None, cdma=False, waits=['c'],
             extra=[[w_dma(S_W, 3, sw)[0]] + [Ins(y, vm='W31') for y in w_dma(S_W, 3, sw)[1:]], X(0, 6)])
    kv_kstep(st3, kind, 1, wsrc=None, cdma=False, waits=['W31'], extra=[wq_dma(0), wq_dma(1), X(6, 8), wq_dma(2)])
    kv_kstep(st3, kind, 2, wsrc=None, cdma=False, waits=['x2'], extra=[wq_dma(3), X(8, 11), wq_dma(4), wq_dma(5)])
    kv_kstep(st3, kind, 3, wsrc=None, cdma=False, nextc=False, nextw=False, waits=['q2'], extra=[wq_dma(6), X(11, 14), wq_dma(8)])
    assert not st3.q, st3.q
    ST.stamp(A, 'kv_end')
    st3.emit_all(wq_dma(9)); st3.emit_all(wq_dma(7))
    def pack(pi):
        t0, t1 = pair_regs(pi, 0), pair_regs(pi, 1)
        if t1.kind == 'a':
            tm = R('v', 24, 4)
            for k in range(4): A(f'v_accvgpr_read_b32 {tm[k]}, {t1[k]}')
            t1 = tm
        A(f'v_cvt_pk_bf16_f32 {t0[0]}, {t0[0]}, {t0[1]}'); A(f'v_cvt_pk_bf16_f32 {t0[1]}, {t0[2]}, {t0[3]}')
        A(f'v_cvt_pk_bf16_f32 {t0[2]}, {t1[0]}, {t1[1]}'); A(f'v_cvt_pk_bf16_f32 {t0[3]}, {t1[2]}, {t1[3]}')
    A('s_nop 3')
    rest = X(14, 28)
    for pi in range(32):
        pack(pi)
        if rest and pi % 2 == 0:
            st3.emit(rest.pop(0)); st3.emit(rest.pop(0))
    assert not rest
    stores = []
    for pi in range(32):
        if kind == 'K':
            sp, tb = divmod(pi, 8); vo, imm, so = vST[sp >> 1], (sp & 1)*2048 + (tb & 1)*1024, sT0 + (tb >> 1)
        else:
            db, p2 = divmod(pi, 4); vo, imm, so = vST[db >> 2], (db & 3)*1024, sT0 + p2
        stores.append(Ins(f'buffer_store_dwordx4 {pair_regs(pi, 0)}, v{vo}, s[{S_OUT}:{S_OUT+3}], s{so} offen offset:{imm}{STFLAG}', vm='st'))
    A(f's_lshl_b32 s67, s{sWC}, 8'); A(f's_add_u32 s67, s67, {WBASE - QWIN[0]}')
    for db in range(8):
        A(f'v_subrev_u32 v{vWA[db]}, s67, v{vWA[db]}')
    st3.wait_vm('q6', 'x0')
    mode = OPT.get('stmode', 'inter')
    if mode == 'none': stores = []
    if mode == 'before':
        for x in stores: st3.emit(x)
        stores = []
    tile = q_phase(A, st3.vq, vWA, wq_dma, lambda qb, s_: XN[qb][s_], lambda db: (db & 7, (db >> 3)*256, (db >> 3)*256 + 2048),
                   tile=qk_tile, extra=stores, hook=(lambda s_, st_: kv_signal(A, L, s_, st_)) if FUSED else None)
    A('s_branch k1_q')

STFLAG = ''
def set_opt(**kw):
    global STFLAG
    OPT.update(kw)
    STFLAG = OPT.get('stflag', '')
VQ_AFTER = {}

def q_phase(A, vq, rdreg, dmafn, xb, imm_of, nsteps=14, tile=None, extra=None, hook=None):
    NR = 8
    RING = [R('a', 32 + 4*i, 4) for i in range(NR)]
    LA = 6
    if tile is None:
        tile = lambda db, qb: R('v', ACCV + (db*2+qb)*4, 4)
    extra = list(extra or [])
    st = Stream(A, None, vq)
    st.wait_vm('q6'); A('s_barrier')
    def rd(k):
        s_, db = divmod(k, 16)
        r, i0, i1 = imm_of(db)
        o = QSLOT[s_] - QWIN[s_]
        d = RING[k % NR]
        return [Ins(f'ds_read_b64_tr_b16 {d.sub(0,2)}, v{rdreg[r]} offset:{o + i0}', lds=f'Q{k}a'),
                Ins(f'ds_read_b64_tr_b16 {d.sub(2,2)}, v{rdreg[r]} offset:{o + i1}', lds=f'Q{k}b')]
    for k in range(LA):
        st.emit_all(rd(k))
    for s in range(nsteps):
        fill = {g: [] for g in range(-1, 32)}
        mf = []
        delta = (QWIN[s+1] - QWIN[s]) & 0xffffffff if s + 1 < nsteps else 0
        for db in range(16):
            k = s*16 + db
            for qb in range(2):
                d = tile(db, qb)
                mf.append(mfma16(d, RING[k % NR], xb(qb, s), '0' if s == 0 else d, (f'Q{k}a', f'Q{k}b') if qb == 0 else ()))
            if k + LA < nsteps*16:
                nk = k + LA; ns, ndb = divmod(nk, 16)
                r = imm_of(ndb)[0]
                if delta and ns == s + 1 and all(imm_of(x)[0] != r for x in range(ndb)):
                    fill[2*db].append(f'v_add_u32 v{rdreg[r]}, {hex(delta)}, v{rdreg[r]}')
                rr = rd(nk)
                fill[2*db].append(rr[0]); fill[2*db+1].append(rr[1])
        if s > 0 and QWIN[s] != QWIN[s-1]:
            d0 = (QWIN[s] - QWIN[s-1]) & 0xffffffff
            seen = set(imm_of(x)[0] for x in range(LA))
            for r in range(len(rdreg)):
                if r not in seen: fill[-1].append(f'v_add_u32 v{rdreg[r]}, {hex(d0)}, v{rdreg[r]}')
        if s == 4:
            l = []
            for tau in range(10, nsteps): l += dmafn(tau)
            for n, x in enumerate(l): fill[min(1 + n, 31)].append(x)
        if extra and s != 4:
            for g in OPT.get('stgaps', (5, 15, 25)):
                if extra: fill[g].append(extra.pop(0))
        st.wait_vm(f'x{s}')
        st.emit_all(gapfill(mf, fill))
        if s == 3:
            st.wait_vm('q9', 'q8', 'q7'); A('s_barrier')
        if s == 8:
            st.wait_vm(f'q{nsteps-1}'); A('s_barrier')
        if hook: hook(s, st)
    assert not extra
    return tile

ST = Stamps(False)
LSTAMP = False
OPT = {}
FUSED = False
def gen_k1(A, stamps=False, fused=False, stamper=None):
    global ST, FUSED, STFLAG
    FUSED = fused
    if fused: STFLAG = ' sc1'; OPT.setdefault('stgaps', (3, 11, 19, 27))
    ST = stamper or Stamps(stamps)
    global LSTAMP
    LSTAMP = stamps and OPT.get('lane', False) and not fused
    kernel_header(A, 'mega_kernel' if fused else 'k1_kernel')
    A('s_cmp_ge_u32 s2, 256'); A('s_cbranch_scc1 ' + ('mega_end' if fused else 'k1_end'))
    A('s_load_dwordx4 s[36:39], s[0:1], 0')
    A('s_load_dwordx4 s[40:43], s[0:1], 16')
    A('s_load_dwordx2 s[44:45], s[0:1], 32')
    A('s_load_dwordx2 s[46:47], s[0:1], 96')
    A('s_load_dwordx2 s[70:71], s[0:1], 88')
    A('v_lshrrev_b32 v23, 6, v0')
    A('v_and_b32 v0, 63, v0')
    A(f'v_readfirstlane_b32 s{sW}, v23')
    A('s_and_b32 s60, s2, 7')
    A('s_lshr_b32 s61, s2, 3')
    A('s_and_b32 s62, s61, 7')
    A('s_lshr_b32 s63, s61, 3')
    A(f's_lshr_b32 s{sKIND}, s63, 1')
    A('s_and_b32 s63, s63, 1')
    A('s_lshl_b32 s64, s60, 1')
    A('s_add_u32 s63, s64, s63')
    A('s_lshr_b32 s65, s61, 4')
    A('s_add_u32 s65, s64, s65')
    A('s_and_b32 s66, s61, 15')
    if fused:
        A(f's_mov_b32 s{sJOB}, s66')
        A('s_sub_u32 s67, 15, s66'); A('s_sub_u32 s68, s66, 8'); A('s_cmp_lt_u32 s66, 8'); A('s_cselect_b32 s66, s67, s68')
        A(f's_lshl_b32 s67, s{sKIND}, 3'); A('s_add_u32 s67, s67, s62'); A('s_lshl_b32 s67, s67, 2'); A('s_lshl_b32 s68, s63, 7')
        A(f's_add_u32 s{sFKV}, s67, s68')
        if F_KV: A(f's_add_u32 s{sFKV}, s{sFKV}, {F_KV}')
    A(f's_lshr_b32 s{sWR}, s{sW}, 1')
    A(f's_and_b32 s{sWC}, s{sW}, 1')
    A('s_waitcnt lgkmcnt(0)')
    if fused: A('s_mov_b32 s98, s46'); A('s_mov_b32 s99, s47')
    ST.stamp(A, 'start')
    srd(A, S_X, 's46', 's47', 128*14336, add=WS_XN)
    srd(A, S_C, 's38', 's39', 2048*1024*2)
    A('s_lshl_b32 s67, s65, 9')
    A(f's_add_u32 s{S_WQ}, s40, s67'); A(f's_addc_u32 s{S_WQ+1}, s41, 0')
    A(f's_sub_u32 s{S_WQ+2}, {448*8192}, s67'); A(f's_mov_b32 s{S_WQ+3}, 0x00020000')
    A(f's_cmp_eq_u32 s{sKIND}, 0')
    A('s_cselect_b32 s68, s42, s44'); A('s_cselect_b32 s69, s43, s45')
    A('s_lshl_b32 s67, s63, 9')
    A(f's_add_u32 s{S_W}, s68, s67'); A(f's_addc_u32 s{S_W+1}, s69, 0')
    A(f's_sub_u32 s{S_W+2}, {1024*8192}, s67'); A(f's_mov_b32 s{S_W+3}, 0x00020000')
    A(f's_lshl_b32 s67, s{sKIND}, 24'); A('s_lshl_b32 s68, s63, 20'); A('s_add_u32 s67, s67, s68')
    A(f's_add_u32 s{S_OUT}, s46, s67'); A(f's_addc_u32 s{S_OUT+1}, s47, 0')
    A(f's_mov_b32 s{S_OUT+2}, 0x100000'); A(f's_mov_b32 s{S_OUT+3}, 0x00020000')
    A('s_lshl_b32 s67, s65, 20'); A(f's_add_u32 s67, s67, {WS_Q}')
    A(f's_add_u32 s{S_Q}, s46, s67'); A(f's_addc_u32 s{S_Q+1}, s47, 0')
    A(f's_mov_b32 s{S_Q+2}, 0x100000'); A(f's_mov_b32 s{S_Q+3}, 0x00020000')
    srd(A, S_XRAW, 's36', 's37', 2048*448*2)
    srd(A, S_DBG, 's70', 's71', 256)
    A('s_lshl_b32 s67, s2, 3'); A(f's_lshl_b32 s68, s{sW}, 1'); A('s_add_u32 s67, s67, s68')
    A('v_and_b32 v25, 1, v0'); A('v_add_u32 v25, s67, v25')
    A('v_lshrrev_b32 v26, 1, v0')
    A('s_movk_i32 s68, 896'); A('v_mul_lo_u32 v27, v25, s68'); A('v_lshl_add_u32 v27, v26, 4, v27')
    A('v_add_u32 v28, 512, v27'); A('v_mov_b32 v29, 0x7f000000'); A('v_cmp_gt_u32 vcc, 24, v26'); A('s_nop 1')
    A('v_cndmask_b32 v28, v29, v28, vcc')
    A(f'buffer_load_dwordx4 v[32:35], v27, s[{S_XRAW}:{S_XRAW+3}], 0 offen')
    A(f'buffer_load_dwordx4 v[36:39], v28, s[{S_XRAW}:{S_XRAW+3}], 0 offen')
    A('v_lshrrev_b32 v27, 4, v25'); A('s_movk_i32 s68, 14336'); A('v_mul_lo_u32 v27, v27, s68')
    A('v_and_b32 v28, 15, v25'); A('v_lshl_add_u32 v27, v28, 4, v27')
    A('v_lshrrev_b32 v28, 2, v26'); A('v_lshl_add_u32 v27, v28, 10, v27')
    A('v_and_b32 v28, 3, v26'); A('v_lshl_add_u32 v44, v28, 8, v27')
    A('v_add_u32 v45, 0x2000, v44'); A('v_cndmask_b32 v45, v29, v45, vcc')
    A(f's_mov_b32 s{sXFL}, s2'); A(f's_lshl_b32 s{sXRD}, s66, 4')
    A('s_lshr_b32 s67, s2, 3'); A('s_and_b32 s67, s67, 3'); A(f's_sub_u32 s{sSIG}, 6, s67')
    A('v_and_b32 v23, 15, v0'); A('v_lshrrev_b32 v24, 4, v0')
    A(f'v_lshlrev_b32 v{vLANE16}, 4, v0')
    A('s_lshl_b32 s67, s62, 8'); A(f's_lshl_b32 s68, s{sW}, 6'); A('s_add_u32 s67, s67, s68')
    A('v_lshrrev_b32 v27, 3, v0'); A('v_add_u32 v27, s67, v27'); A('v_lshlrev_b32 v27, 11, v27')
    A('v_and_b32 v28, 7, v0')
    for j in range(4):
        A(f'v_xor_b32 v29, v28, v24' if j % 2 == 0 else f'v_add_u32 v29, 4, v24')
        if j % 2 == 1: A('v_xor_b32 v29, v28, v29')
        A(f'v_lshl_add_u32 v{vDC[j]}, v29, 4, v27')
        if j: A(f'v_add_u32 v{vDC[j]}, {j*(8*2048 - 1024)}, v{vDC[j]}')
    A('v_lshrrev_b32 v27, 5, v0'); A('v_and_b32 v28, 31, v0')
    A(f's_lshl_b32 s67, s{sW}, 3'); A(f's_and_b32 s68, s{sW}, 1'); A('s_lshl_b32 s68, s68, 2')
    for j in range(4):
        A(f'v_add_u32 v29, {2*j}, v27')
        A(f'v_and_b32 v30, 3, v29'); A('v_or_b32 v30, s68, v30'); A('v_lshlrev_b32 v30, 1, v30')
        A('v_xor_b32 v30, v28, v30')
        A('v_add_u32 v29, s67, v29'); A('v_lshlrev_b32 v29, 13, v29')
        A(f'v_lshl_add_u32 v{vDW[j]}, v30, 4, v29')
        if j: A(f'v_subrev_u32 v{vDW[j]}, {1024*j}, v{vDW[j]}')
    A(f's_lshl_b32 s{sWB}, s{sW}, 12'); A(f's_add_u32 s{sWB}, s{sWB}, {WBASE}')
    A(f's_lshl_b32 s{sCB}, s{sW}, 13')
    A(f's_mov_b32 s{sWOFF}, 0')
    def cstage(stage, halves):
        for hf in halves:
            A(f's_mov_b32 s{sTMP+hf}, {128*stage + 65536*hf}')
            A(f's_add_u32 s{sCWR}, s{sCB}, {32768*(stage % 3)}')
            l = c_dma(hf); A(l[0]); A('s_nop 0'); A.extend(l[1:])
    def wstage(t):
        l = w_dma(S_W, t % 4, f's{sWOFF}'); A(l[0]); A('s_nop 0'); A.extend(l[1:])
        A(f's_add_u32 s{sWOFF}, s{sWOFF}, 0x40000')
    cstage(0, (0, 1)); wstage(0); wstage(1); cstage(1, (0, 1)); wstage(2); cstage(2, (0,))
    A(f's_mov_b32 s{sCRD}, 0')
    A(f's_add_u32 s{sCWR}, s{sCB}, {32768*2}')
    A(f's_mov_b32 s{sCOFF}, {128*2}')
    A(f's_mov_b32 s{sTMP}, {128*2}'); A(f's_mov_b32 s{sTMP+1}, {128*2 + 65536}')
    A(f's_lshl_b32 s67, s{sWR}, 14')
    A('v_lshrrev_b32 v27, 1, v23')
    for s in range(2):
        A(f'v_add_u32 v28, {4*s}, v24'); A('v_xor_b32 v28, v28, v27'); A('v_lshlrev_b32 v28, 4, v28')
        A('v_lshl_add_u32 v28, v23, 7, v28'); A(f'v_add_u32 v{vCL[s]}, s67, v28')
    A('v_lshrrev_b32 v27, 2, v23')
    A('v_lshl_add_u32 v28, v24, 3, v27'); A('v_lshlrev_b32 v28, 9, v28')
    A('v_and_b32 v29, 3, v23'); A('v_lshl_add_u32 v28, v29, 3, v28')
    A(f's_lshl_b32 s67, s{sWC}, 8'); A(f's_add_u32 s67, s67, {WBASE}'); A('v_add_u32 v28, s67, v28')
    A('v_and_b32 v29, 1, v24'); A('v_lshl_or_b32 v29, v29, 2, v27'); A('v_lshlrev_b32 v29, 5, v29')
    for db in range(8):
        A(f'v_xor_b32 v30, {db*32}, v29'); A(f'v_add_u32 v{vWA[db]}, v28, v30')
    A('s_lshl_b32 s67, s62, 17'); A(f's_lshl_b32 s68, s{sWR}, 16'); A('s_add_u32 s67, s67, s68')
    A(f's_lshl_b32 s68, s{sWC}, 13'); A('s_add_u32 s67, s67, s68')
    A(f'v_add_u32 v{vST[0]}, s67, v{vLANE16}'); A(f'v_add_u32 v{vST[1]}, 0x1000, v{vST[0]}')
    for k in range(4): A(f's_mov_b32 s{sT0+k}, {16384*k}')
    A('s_lshl_b32 s67, s66, 3'); A(f's_lshl_b32 s68, s{sW}, 1'); A('s_add_u32 s67, s67, s68'); A('s_mul_i32 s67, s67, 14336')
    A(f'v_add_u32 v{vXO[0]}, s67, v{vLANE16}'); A(f'v_add_u32 v{vXO[1]}, 14336, v{vXO[0]}')
    A(f's_lshl_b32 s{sW4K}, s{sW}, 12')
    A(f's_mov_b32 s{sOOB}, 0x7f000000')
    A('s_mul_i32 s67, s66, 28'); A(f's_mul_i32 s68, s{sW}, 7'); A('s_add_u32 s67, s67, s68')
    A('v_bfe_u32 v27, v0, 2, 3'); A('v_add_u32 v27, s67, v27'); A('v_lshlrev_b32 v27, 13, v27')
    A('v_and_b32 v26, 3, v0'); A(f'v_lshl_add_u32 v{vPQ}, v26, 7, v27')
    A('s_waitcnt vmcnt(32)')
    A('s_mov_b32 s67, 0x3f803f80'); A('v_mov_b32 v40, 0'); A('v_mov_b32 v41, 0')
    for k in range(8):
        A(f'v_dot2c_f32_bf16 v40, s67, v{32+k}'); A(f'v_dot2c_f32_bf16 v41, v{32+k}, v{32+k}')
    A('s_nop 2')
    for r in (40, 41):
        for ror in (2, 4, 8):
            A('s_nop 1'); A(f'v_add_f32_dpp v{r}, v{r}, v{r} row_ror:{ror} row_mask:0xf bank_mask:0xf')
        A(f'v_mov_b32 v42, v{r}'); A('s_nop 1'); A(f'v_permlane16_swap_b32 v{r}, v42'); A('s_nop 1'); A(f'v_add_f32 v{r}, v{r}, v42')
        A(f'v_mov_b32 v42, v{r}'); A('s_nop 1'); A(f'v_permlane32_swap_b32 v{r}, v42'); A('s_nop 1'); A(f'v_add_f32 v{r}, v{r}, v42')
    A(f's_mov_b32 s67, {fbits(1.0/448)}'); A(f's_mov_b32 s68, {fbits(1e-5)}')
    A('v_mul_f32 v40, s67, v40'); A('v_mul_f32 v41, s67, v41'); A('v_fma_f32 v41, -v40, v40, v41')
    A('v_max_f32 v41, 0, v41'); A('v_add_f32 v41, s68, v41'); A('v_rsq_f32 v41, v41'); A(f's_mov_b32 s67, {fbits(LOG2E/16)}')
    A('v_mul_f32 v41, s67, v41'); A('v_mul_f32 v40, v40, v41')
    A('s_mov_b32 s67, 0xffff0000')
    for k in range(8):
        A(f'v_lshlrev_b32 v42, 16, v{32+k}'); A(f'v_and_b32 v43, s67, v{32+k}')
        A('v_fma_f32 v42, v42, v41, -v40'); A('v_fma_f32 v43, v43, v41, -v40')
        A(f'v_cvt_pk_bf16_f32 v{32+k}, v42, v43')
    A(f'buffer_store_dwordx4 v[32:35], v44, s[{S_X}:{S_X+3}], 0 offen sc1')
    A(f'buffer_store_dwordx4 v[36:39], v45, s[{S_X}:{S_X+3}], 0 offen sc1')
    flag_srd(A, S_XRAW, 's46', 's47')
    A('s_lshl_b32 s67, s2, 6'); A(f's_lshl_b32 s68, s{sW}, 4'); A('s_add_u32 s67, s67, s68')
    A('v_and_b32 v42, 3, v0'); A('v_lshl_add_u32 v42, v42, 2, s67'); A('v_mov_b32 v43, 0')
    A(f'buffer_store_dword v43, v42, s[{S_XRAW}:{S_XRAW+3}], 0 offen sc1')
    ST.stamp(A, 'p0')
    A('s_waitcnt vmcnt(19)')
    A('s_barrier')
    ST.stamp(A, 'kv_start')
    if LSTAMP:
        A('s_mov_b32 s101, 0'); A('v_mov_b32 v0, 0'); lane_stamp(A, 0, 101)
    A(f's_cmp_eq_u32 s{sKIND}, 0')
    A('s_cbranch_scc0 k1_V')
    kv_path(A, 'K')
    kv_path(A, 'V')
    A.label('k1_q')
    if fused: A('s_barrier')
    ST.stamp(A, 'q_end')
    A('s_lshl_b32 s67, s66, 2'); A(f's_add_u32 s67, s67, s{sW}'); A('s_lshl_b32 s67, s67, 14')
    A(f'v_add_u32 v{vST[0]}, s67, v{vLANE16}')
    for k in range(4): A(f's_mov_b32 s{sT0+k}, {4096*k}')
    A('s_nop 7')
    qst = []
    for s in range(8):
        for qb in range(2):
            t0, t1 = qk_tile(2*s, qb), qk_tile(2*s+1, qb)
            f = 2*s + qb
            D = R('v', 32 + 4*f, 4)
            if t0.kind == 'a':
                for k in range(4): A(f'v_accvgpr_read_b32 v{24+k}, {t0[k]}')
                t0 = R('v', 24, 4)
            if t1.kind == 'a':
                for k in range(4): A(f'v_accvgpr_read_b32 v{28+k}, {t1[k]}')
                t1 = R('v', 28, 4)
            A(f'v_cvt_pk_bf16_f32 {D[0]}, {t0[0]}, {t0[1]}'); A(f'v_cvt_pk_bf16_f32 {D[1]}, {t0[2]}, {t0[3]}')
            A(f'v_cvt_pk_bf16_f32 {D[2]}, {t1[0]}, {t1[1]}'); A(f'v_cvt_pk_bf16_f32 {D[3]}, {t1[2]}, {t1[3]}')
            x = f'buffer_store_dwordx4 {D}, v{vST[0]}, s[{S_Q}:{S_Q+3}], s{sT0 + (f >> 2)} offen offset:{(f & 3)*1024}' + (' sc1' if fused else '')
            if fused: qst.append(x)
            else: A(x)
    if fused:
        A(f's_cmp_ge_u32 s{sJOB}, 8'); A('s_cbranch_scc0 k1_q0')
        A(f's_cmp_lt_u32 s{sJOB}, 15'); A('s_cbranch_scc0 k1_q0')
        for k in range(64): A(f'v_accvgpr_write_b32 a{96+k}, v{32+k}')
        A('s_branch k1_qdone')
        A.label('k1_q0')
        for k in range(64): A(f'v_accvgpr_write_b32 a{k}, v{32+k}')
        A.label('k1_qdone')
        ST.stamp(A, 'p1_end')
        return
    if stamps:
        A('s_waitcnt vmcnt(0)')
        ST.stamp(A, 'k1_drain')
    if LSTAMP: lane_dump(A, 0, 's46', 's47', sW, 'k1_ld')
    ST.dump(A, 's46', 's47', sW, 'k1_dumpend')
    A.label('k1_end')
    A('s_endpgm')

if __name__ == '__main__':
    A = Asm()
    A('; @launch kernel=k1_kernel grid=(256,1,1) block=(256,1,1) lds=163840')
    A('.amdgcn_target "amdgcn-amd-amdhsa--gfx950"')
    import sys
    gen_k1(A, stamps=('stamp' in sys.argv))
    kernel_desc(A, 'k1_kernel')
    open('k1.s', 'w').write(A.text())
    v = check_hazards(A.lines, 'k1')
    print(len(v), 'hazard reports;', len(A.lines), 'lines')
```

```python
from asmlib import *
from k1 import fbits

S_K, S_V, S_Q, S_WO, S_P = 4, 8, 12, 16, 20
sW = 28; sH = 29; sQT = 30; sB0 = 31; sB1 = 32; sWE = 33
sA = 34
sKOFF = 35; sVOFF = 36
sW4K = 37
sNIT = 38; sT = 39; sT2 = 40; sTHR = 41; sNEGINF = 42
sM = 44
sWS = 52
S_BO = 24; S_DBG = 56; sMODE = 43; sPI = 63; sNB = 64; sFL = 65; sQLD = 66; sQST = 67; sT3_ = 62
NB0 = 28
BO = lambda f: R('a', 96 + 4*f, 4)
vL16 = 1; vKA = 2; vVA = [3, 4]; vDK = 5; vL = [6, 7]; vMX = [10, 11]; vD = 12
vOA = list(range(13, 21)); vDO = list(range(21, 25)); vST = [25, 26]; vT = [27, 28, 29, 30, 31]
O = lambda db, qb: R('v', 32 + (db*2 + qb)*4, 4)
S = lambda p, kk, qb: R('v', 160 + 16*p + (kk*2 + qb)*4, 4)
P = lambda p, qb: R('v', 192 + 8*p + 4*qb, 4)
NM = lambda qb: R('v', 208 + 4*qb, 4)
Q = lambda s, qb: R('a', (s*2 + qb)*4, 4)
NF = 8; LA = 6
RING = [R('a', 64 + 4*i, 4) for i in range(NF)]
THR = 20.0
ST = Stamps(False)

def frag_read(i, p, tagp):
    dst = RING[i % NF]
    if i < 16:   return Ins(f'ds_read_b128 {dst}, v{vVA[1-p]} offset:{1024*i}', lds=f'{tagp}{i}')
    elif i < 32: return Ins(f'ds_read_b128 {dst}, v{vKA} offset:{1024*(i-16)}', lds=f'{tagp}{i}')
    else:        return Ins(f'ds_read_b128 {dst}, v{vVA[p]} offset:{1024*(i-32)}', lds=f'n{i-32}')

def dma_v():
    return [f's_add_u32 s{sT}, s{sA}, 0x8000', f's_and_b32 s{sT}, s{sT}, 0xc000', f's_add_u32 s{sT}, s{sT}, s{sW4K}', f's_add_u32 m0, s{sT}, 0x10000'] + \
           [Ins(f'buffer_load_dwordx4 v{vDK}, s[{S_V}:{S_V+3}], s{sVOFF} offen offset:{1024*k}{SC} lds', vm='V') for k in range(4)]
def dma_k():
    return [f's_add_u32 m0, s{sA}, s{sW4K}'] + \
           [Ins(f'buffer_load_dwordx4 v{vDK}, s[{S_K}:{S_K+3}], s{sKOFF} offen offset:{1024*k}{SC} lds', vm='K') for k in range(4)]

def emit_dma(st, l):
    for x in l:
        st.emit(x)
        if isinstance(x, str) and ' m0,' in x: st.emit('s_nop 0')

def maxtree(p):
    r = [S(p, kk, qb)[k] for kk in range(2) for qb in range(2) for k in range(4)]
    l = [f'v_max3_f32 v{vMX[0]}, {r[0]}, {r[1]}, {r[2]}']
    for k in range(6): l.append(f'v_max3_f32 v{vMX[0]}, v{vMX[0]}, {r[3+2*k]}, {r[4+2*k]}')
    l.append(f'v_max_f32 v{vMX[0]}, v{vMX[0]}, {r[15]}')
    l.append(f'v_cmp_lt_f32 vcc, s{sTHR}, v{vMX[0]}')
    return l

def expseq(p):
    seq = []
    order = [(qb, kk, k) for qb in range(2) for kk in range(2) for k in range(4)]
    pend_add = []; pend_cvt = []
    for n, (qb, kk, k) in enumerate(order):
        r = S(p, kk, qb)[k]
        seq.append(f'v_exp_f32 {r}, {r}')
        if pend_add: seq.append(pend_add.pop(0))
        if pend_cvt and n % 2 == 1: seq.append(pend_cvt.pop(0))
        pend_add.append(f'v_add_f32 v{vL[qb]}, v{vL[qb]}, {r}')
        if k % 2 == 1:
            pend_cvt.append(f'v_cvt_pk_bf16_f32 {P(p, qb)[kk*2 + k//2]}, {S(p, kk, qb)[k-1]}, {r}')
    seq.append('s_nop 0')
    seq += pend_add + pend_cvt
    return seq

def pv_mfmas(p, tagp):
    m = []
    for db in range(16):
        for qb in range(2):
            m.append(mfma16(O(db, qb), RING[db % NF], P(1-p, qb), O(db, qb), (f'{tagp}{db}',) if qb == 0 else ()))
    return m
def qk_mfmas(p_out, tagp, base=16, czero=False):
    m = []
    for f in range(16):
        s, kk = divmod(f, 2)
        for qb in range(2):
            d = S(p_out, kk, qb)
            c = ('0' if czero else NM(qb)) if s == 0 else d
            m.append(mfma16(d, RING[(base + f) % NF], Q(s, qb), c, (f'{tagp}{base+f}',) if qb == 0 else ()))
    return m

def book_start(p):
    return [f's_add_u32 s{sT}, s{sA}, 0x4000', f's_and_b32 s{sT}, s{sT}, 0xc000', f'v_add_u32 v{vKA}, s{sT}, v{vL16}',
            f's_add_u32 s{sT}, s{sA}, 0x10000', f'v_add_u32 v{vVA[p]}, s{sT}, v{vL16}']
def book_end():
    return [f's_add_u32 s{sA}, s{sA}, 0x4000', f's_and_b32 s{sA}, s{sA}, 0xc000',
            f's_add_u32 s{sKOFF}, s{sKOFF}, 0x4000', f's_add_u32 s{sVOFF}, s{sVOFF}, 0x4000']

def full_iter(st, p, lab, dv=True, dk=True, mid_label=None, nextv=True):
    A = st.A
    st.q = [('c' + x[1:]) if x.startswith('n') else x for x in st.q]
    pv = pv_mfmas(p, 'c'); qk = qk_mfmas(1-p, 'c')
    fill = {g: [] for g in range(-1, 64)}
    fill[-1] += book_start(p)
    for i in range(32):
        k = i + LA
        if k < 32 or nextv:
            fill[2*i].append(frag_read(k, p, 'c'))
    d = []
    if dv: d += dma_v()
    if dk: d += dma_k()
    gaps = [1, 1, 3, 3, 5, 7, 9, 11, 13, 15, 17, 19, 21] if dv else [1, 3, 5, 7, 9]
    for g, x in zip(gaps, d): fill[g].append(x)
    mt = maxtree(p)
    for k, x in enumerate(mt): fill[10 + 2*k + 1].append(x)
    part1 = gapfill(pv, {g: fill[g] for g in range(-1, 32)})
    st.emit_all(part1)
    A(f's_cbranch_vccnz {lab}_slow')
    A.label(f'{lab}_back')
    if mid_label: A.label(mid_label)
    ex = expseq(p)
    fill2 = {g: list(fill[32 + g]) for g in range(32)}
    n = len(ex); k = 0
    for g in range(32):
        tgt = (n*(g+1) + 31) // 32
        while k < tgt:
            fill2[g].append(ex[k]); k += 1
    fill2[30] += book_end()
    st.emit_all(gapfill(qk, fill2))

def slow_path(A, p, lab):
    A.label(f'{lab}_slow')
    A('s_nop 7')
    rowmax_update(A, p, first=False)
    A(f's_branch {lab}_back')

def xreduce(A, r, op, tmp):
    A(f'v_mov_b32 v{tmp}, v{r}'); A('s_nop 1'); A(f'v_permlane16_swap_b32 v{r}, v{tmp}'); A('s_nop 1'); A(f'{op} v{r}, v{r}, v{tmp}')
    A(f'v_mov_b32 v{tmp}, v{r}'); A('s_nop 1'); A(f'v_permlane32_swap_b32 v{r}, v{tmp}'); A('s_nop 1'); A(f'{op} v{r}, v{r}, v{tmp}')

def rowmax_update(A, p, first):
    for qb in range(2):
        r = [S(p, kk, qb)[k] for kk in range(2) for k in range(4)]
        m = vMX[qb]
        A(f'v_max3_f32 v{m}, {r[0]}, {r[1]}, {r[2]}')
        A(f'v_max3_f32 v{m}, v{m}, {r[3]}, {r[4]}')
        A(f'v_max3_f32 v{m}, v{m}, {r[5]}, {r[6]}')
        A(f'v_max_f32 v{m}, v{m}, {r[7]}')
        xreduce(A, m, 'v_max_f32', vT[0])
        if not first:
            A(f'v_max_f32 v{m}, 0, v{m}')
        for x in r: A(f'v_sub_f32 {x}, {x}, v{m}')
        if first:
            for k in range(4): A(f'v_sub_f32 {NM(qb)[k]}, 0, v{m}')
        else:
            for k in range(4): A(f'v_sub_f32 {NM(qb)[k]}, {NM(qb)[k]}, v{m}')
            A(f'v_exp_f32 v{vT[1]}, -v{m}')
            A('s_nop 0')
            A(f'v_mul_f32 v{vL[qb]}, v{vL[qb]}, v{vT[1]}')
            for db in range(16):
                for k in range(4): A(f'v_mul_f32 {O(db, qb)[k]}, {O(db, qb)[k]}, v{vT[1]}')

def apply_mask(A, p):
    for r in range(4):
        A(f'v_cmp_gt_i32 s[{sM+2*r}:{sM+2*r+1}], {r}, v{vD}')
    A(f'v_mov_b32 v{vT[0]}, s{sNEGINF}')
    for r in range(4):
        for t in (S(p, 0, 0), S(p, 1, 1)):
            A(f'v_cndmask_b32 {t[r]}, {t[r]}, v{vT[0]}, s[{sM+2*r}:{sM+2*r+1}]')
        A(f'v_mov_b32 {S(p, 1, 0)[r]}, s{sNEGINF}')

def pv_only(st, p):
    A = st.A
    st.q = [('c' + x[1:]) if x.startswith('n') else x for x in st.q]
    pv = pv_mfmas(p, 'c')
    fill = {g: [] for g in range(-1, 32)}
    for i in range(16):
        k = i + LA
        if k < 16: fill[2*i].append(frag_read(k, p, 'c'))
    st.emit_all(gapfill(pv, fill))

def slab_dma(sg, so):
    slot = sg % 4
    l = []
    for a in range(2):
        l.append(f's_add_u32 m0, s{sT2}, {slot*32768 + 4096*a}')
        l.append(f's_mov_b32 s{so}, {128*sg + 28672*a}')
        l += [Ins(f'buffer_load_dwordx4 v{vDO[b]}, s[{S_WO}:{S_WO+3}], s{so} offen offset:{1024*b} lds', vm=f'W{sg}') for b in range(4)]
    return l

def oproj(A, first_slabs_issued=True):
    C = lambda s, qb: O(2*s, qb)
    ACC = lambda par, nb, qb: O(2*(par*4 + nb) + 1, qb)
    st = Stream(A, None, ['W0']*8 + ['W1']*8)
    for sg in range(2, 4): st.emit_all(slab_dma(sg, sT))
    NR = 8; LAo = 6
    def rd(k):
        sg, r = divmod(k, 32); nb, s = divmod(r, 8)
        slot = sg % 4
        a = vOA[nb + 4*(slot >> 1)]; off = (slot & 1)*32768 + s*4096
        d = RING[k % NR]
        return [Ins(f'ds_read_b64_tr_b16 {d.sub(0,2)}, v{a} offset:{off}', lds=f'o{k}a'),
                Ins(f'ds_read_b64_tr_b16 {d.sub(2,2)}, v{a} offset:{off + 2048}', lds=f'o{k}b')]
    def stores(sg):
        par = sg & 1; l = []
        l.append(f's_mov_b32 s{sT}, {2048*sg}')
        for half in range(2):
            for qb in range(2):
                t0, t1 = ACC(par, 2*half, qb), ACC(par, 2*half+1, qb)
                l += [f'v_cvt_pk_bf16_f32 {t0[0]}, {t0[0]}, {t0[1]}', f'v_cvt_pk_bf16_f32 {t0[1]}, {t0[2]}, {t0[3]}',
                      f'v_cvt_pk_bf16_f32 {t0[2]}, {t1[0]}, {t1[1]}', f'v_cvt_pk_bf16_f32 {t0[3]}, {t1[2]}, {t1[3]}',
                      Ins(f'buffer_store_dwordx4 {t0}, v{vST[qb]}, s[{S_P}:{S_P+3}], s{sT} offen offset:{1024*half}{SC}', vm='st')]
        return l
    st.wait_vm('W0'); A('s_barrier')
    for k in range(LAo): st.emit_all(rd(k))
    for sg in range(7):
        par = sg & 1
        mf = []; fill = {g: [] for g in range(-1, 64)}
        for r in range(32):
            nb, s = divmod(r, 8); k = sg*32 + r
            for qb in range(2):
                d = ACC(par, nb, qb)
                mf.append(mfma16(d, RING[k % NR], C(s, qb), '0' if s == 0 else d, (f'o{k}a', f'o{k}b') if qb == 0 else ()))
            if k + LAo < 7*32 and (r + LAo < 32):
                x = rd(k + LAo); fill[2*r].append(x[0]); fill[2*r+1].append(x[1])
        if sg > 0:
            sl = stores(sg - 1)
            for n, x in enumerate(sl): fill[4 + 2*n].append(x)
        st.emit_all(gapfill(mf, fill))
        if sg + 1 < 7:
            st.wait_vm(f'W{sg+1}'); A('s_barrier')
            if sg + 4 < 7: st.emit_all(slab_dma(sg + 4, sT))
            for r in range(LAo): st.emit_all(rd((sg+1)*32 + r))
    A('s_nop 7')
    st.emit_all(stores(6))

FUSED = False
SC = ''
def gen_k2(A, stamps=False, fused=False, stamper=None):
    global ST, FUSED, SC
    FUSED = fused; SC = ' sc1' if fused else ''
    ST = stamper or Stamps(stamps)
    if not fused:
        kernel_header(A, 'k2_kernel')
        A('s_cmp_ge_u32 s2, 256'); A('s_cbranch_scc1 k2_end')
        A('s_load_dwordx2 s[54:55], s[0:1], 40')
        A(f's_load_dwordx2 s[{sWS}:{sWS+1}], s[0:1], 96')
        A('v_lshrrev_b32 v27, 6, v0'); A('v_and_b32 v0, 63, v0'); A(f'v_readfirstlane_b32 s{sW}, v27')
    else:
        A('s_load_dwordx2 s[54:55], s[0:1], 40')
        A(f's_mov_b32 s{sWS}, s98'); A(f's_mov_b32 s{sWS+1}, s99')
    A('s_and_b32 s60, s2, 7'); A('s_lshr_b32 s61, s2, 3')
    A('s_lshr_b32 s62, s61, 4'); A('s_lshl_b32 s60, s60, 1'); A(f's_add_u32 s{sH}, s60, s62')
    A('s_and_b32 s61, s61, 15')
    A(f's_and_b32 s{sPI}, s61, 7')
    A(f's_lshl_b32 s62, s{sPI}, 2'); A(f's_sub_i32 s{sNB}, {NB0}, s62')
    A(f's_cmp_lt_i32 s{sNB}, 4'); A(f's_cselect_b32 s{sNB}, 0, s{sNB}')
    A(f's_sub_u32 s{sQT}, 15, s{sPI}')
    A(f's_lshl_b32 s{sB1}, s{sQT}, 2'); A(f's_add_u32 s{sB1}, s{sB1}, 4')
    A(f's_mov_b32 s{sWE}, s{sW}')
    A('s_cmp_ge_u32 s61, 8'); A('s_cbranch_scc1 k2_jobB')
    A(f's_mov_b32 s{sB0}, s{sNB}')
    A(f's_cmp_lg_u32 s{sNB}, 0'); A(f's_cselect_b32 s{sMODE}, 1, 0')
    A('s_branch k2_jobdone')
    A.label('k2_jobB')
    A(f's_mov_b32 s{sB0}, 0')
    A(f's_cmp_lg_u32 s{sNB}, 0'); A('s_cbranch_scc0 k2_jobB2')
    A(f's_mov_b32 s{sB1}, s{sNB}'); A(f's_mov_b32 s{sWE}, 99'); A(f's_mov_b32 s{sMODE}, 2')
    A('s_branch k2_jobdone')
    A.label('k2_jobB2')
    A(f's_mov_b32 s{sQT}, s{sPI}'); A(f's_lshl_b32 s{sB1}, s{sQT}, 2'); A(f's_add_u32 s{sB1}, s{sB1}, 4'); A(f's_mov_b32 s{sMODE}, 0')
    A.label('k2_jobdone')
    A(f's_mov_b32 s{sFL}, 0')
    A('s_waitcnt lgkmcnt(0)')
    ST.stamp(A, 'p2_ids')
    A(f's_lshl_b32 s60, s{sH}, 20')
    for sr_, base in ((S_K, WS_K), (S_V, WS_V), (S_Q, WS_Q)):
        A(f's_add_u32 s61, s60, {base}')
        A(f's_add_u32 s{sr_}, s{sWS}, s61'); A(f's_addc_u32 s{sr_+1}, s{sWS+1}, 0')
        A(f's_mov_b32 s{sr_+2}, 0x100000'); A(f's_mov_b32 s{sr_+3}, 0x00020000')
    A(f's_mul_i32 s61, s{sH}, {256*448*2}')
    A(f's_add_u32 s{S_WO}, s54, s61'); A(f's_addc_u32 s{S_WO+1}, s55, 0')
    A(f's_mov_b32 s{S_WO+2}, {256*448*2}'); A(f's_mov_b32 s{S_WO+3}, 0x00020000')
    A(f's_mul_i32 s61, s{sH}, {128*14336}'); A(f's_add_u32 s61, s61, {WS_PART}')
    A(f's_add_u32 s{S_P}, s{sWS}, s61'); A(f's_addc_u32 s{S_P+1}, s{sWS+1}, 0')
    A(f's_mov_b32 s{S_P+2}, {128*14336}'); A(f's_mov_b32 s{S_P+3}, 0x00020000')
    flag_srd(A, S_DBG, f's{sWS}', f's{sWS+1}')
    A(f's_lshl_b32 s61, s{sH}, 3'); A(f's_add_u32 s61, s61, s{sPI}'); A(f's_mul_i32 s61, s61, {4*17*1024}'); A(f's_add_u32 s61, s61, {WS_BO}')
    A(f's_add_u32 s{S_BO}, s{sWS}, s61'); A(f's_addc_u32 s{S_BO+1}, s{sWS+1}, 0')
    A(f's_mov_b32 s{S_BO+2}, {4*17*1024}'); A(f's_mov_b32 s{S_BO+3}, 0x00020000')
    A(f's_lshl_b32 s{sW4K}, s{sW}, 12')
    A(f's_mov_b32 s{sTHR}, {fbits(THR)}'); A(f's_mov_b32 s{sNEGINF}, 0xff800000')
    A(f'v_lshlrev_b32 v{vL16}, 4, v0')
    A(f'v_add_u32 v{vDK}, s{sW4K}, v{vL16}')
    A('v_and_b32 v28, 15, v0'); A('v_lshrrev_b32 v29, 4, v0')
    A(f'v_lshlrev_b32 v30, 2, v29'); A(f'v_sub_u32 v{vD}, v28, v30')
    A('v_lshrrev_b32 v31, 2, v28'); A('v_add_u32 v30, v30, v31')
    A('v_lshrrev_b32 v31, 1, v30'); A('v_and_b32 v31, 3, v31'); A('v_lshlrev_b32 v31, 5, v31')
    A('v_lshlrev_b32 v30, 7, v30'); A('v_and_b32 v28, 3, v28'); A('v_lshl_add_u32 v30, v28, 3, v30')
    for nb in range(4):
        A(f'v_xor_b32 v28, {nb << 5}, v31'); A(f'v_add_u32 v{vOA[nb]}, v30, v28'); A(f'v_add_u32 v{vOA[4+nb]}, 0x10000, v{vOA[nb]}')
    A('v_lshrrev_b32 v28, 3, v0'); A(f's_lshl_b32 s60, s{sW}, 6'); A('v_add_u32 v28, s60, v28')
    A('s_movk_i32 s60, 896'); A('v_mul_lo_u32 v28, v28, s60')
    A('v_lshrrev_b32 v29, 4, v0'); A('v_lshlrev_b32 v29, 1, v29'); A('v_and_b32 v30, 7, v0'); A('v_xor_b32 v29, v29, v30')
    A('v_lshl_add_u32 v28, v29, 4, v28')
    for b in range(4): A(f'v_add_u32 v{vDO[b]}, {6144*b}, v28')
    A(f's_mul_i32 s60, s{sW}, {17*1024}'); A(f'v_add_u32 v8, s60, v{vL16}')
    A(f's_lshl_b32 s60, s{sH}, 7'); A(f's_lshl_b32 s61, s{sPI}, 2'); A('s_add_u32 s60, s60, s61'); A(f's_add_u32 s60, s60, {F_M}'); A('v_mov_b32 v9, s60')
    if fused:
        A(f's_lshl_b32 s60, s{sH}, 7'); A('v_and_b32 v27, 15, v0'); A('v_lshl_add_u32 v27, v27, 2, s60')
        if F_KV: A(f'v_add_u32 v27, {F_KV}, v27')
        A(f's_cmp_eq_u32 s{sMODE}, 2'); A('s_cbranch_scc0 k2_noq')
        A(f's_lshl_b32 s61, s{sPI}, 2'); A('s_add_u32 s60, s60, s61'); A(f's_add_u32 s60, s60, {F_Q}')
        A('v_mov_b32 v28, s60'); A('v_cmp_gt_u32 vcc, 32, v0'); A('s_nop 1'); A('v_cndmask_b32 v27, v28, v27, vcc')
        A.label('k2_noq')
        poll(A, 'k2_kvpoll', S_DBG, 27, 28, 60)
    A(f's_cmp_eq_u32 s{sMODE}, 2'); A(f's_cselect_b32 s{sQLD}, 1, {0 if fused else 1}')
    A(f's_cmp_eq_u32 s{sMODE}, 1'); A(f's_cselect_b32 s{sQST}, {1 if fused else 0}, 0')
    A(f's_lshl_b32 s{sT2}, s{sW}, 13')
    A.label('k2_seg')
    A(f's_lshl_b32 s60, s{sQT}, 2'); A(f's_add_u32 s60, s60, s{sW}'); A('s_lshl_b32 s60, s60, 14')
    A(f'v_add_u32 v27, s60, v{vL16}')
    st = Stream(A)
    A(f's_cmp_eq_u32 s{sQLD}, 1'); A('s_cbranch_scc0 k2_qskip')
    for f in range(16):
        if f % 4 == 0: A(f's_mov_b32 s61, {4096*(f//4)}')
        A(f'buffer_load_dwordx4 {Q(f//2, f%2)}, v27, s[{S_Q}:{S_Q+3}], s61 offen offset:{1024*(f%4)}{SC}')
    A.label('k2_qskip')
    def pk(srd_, ring, d, tag):
        A(f's_add_u32 s60, s{sB0}, {d}'); A('s_lshl_b32 s61, s60, 14')
        A('s_and_b32 s62, s61, 0xc000'); A(f's_add_u32 s62, s62, s{sW4K}'); A(f's_add_u32 m0, s62, {ring}')
        A('s_nop 0')
        for k in range(4):
            st.emit(Ins(f'buffer_load_dwordx4 v{vDK}, s[{srd_}:{srd_+3}], s61 offen offset:{1024*k}{SC} lds', vm=tag))
    pk(S_K, 0, 0, 'K0'); pk(S_K, 0, 1, 'K1'); pk(S_V, 0x10000, 0, 'V0'); pk(S_K, 0, 2, 'K2'); pk(S_V, 0x10000, 1, 'V1'); pk(S_K, 0, 3, 'K3')
    if fused:
        A(f's_cmp_eq_u32 s{sQST}, 1'); A('s_cbranch_scc0 k2_noqst')
        for f in range(16):
            if f % 4 == 0: A(f's_mov_b32 s61, {4096*(f//4)}')
            A(f'buffer_store_dwordx4 v[{32+4*f}:{35+4*f}], v27, s[{S_Q}:{S_Q+3}], s61 offen offset:{1024*(f%4)} sc1')
        A.label('k2_noqst')
    A(f's_lshl_b32 s60, s{sQT}, 3'); A(f's_lshl_b32 s61, s{sW}, 1'); A('s_add_u32 s60, s60, s61'); A('s_mul_i32 s60, s60, 14336')
    A(f'v_add_u32 v{vST[0]}, s60, v{vL16}'); A(f'v_add_u32 v{vST[1]}, 14336, v{vST[0]}')
    for db in range(16):
        for qb in range(2):
            for k in range(4): A(f'v_mov_b32 {O(db, qb)[k]}, 0')
    A(f'v_mov_b32 v{vL[0]}, 0'); A(f'v_mov_b32 v{vL[1]}, 0')
    A(f's_lshl_b32 s{sA}, s{sB0}, 14'); A(f's_and_b32 s{sA}, s{sA}, 0xc000')
    A(f's_add_u32 s{sKOFF}, s{sB0}, 4'); A(f's_lshl_b32 s{sKOFF}, s{sKOFF}, 14')
    A(f's_add_u32 s{sVOFF}, s{sB0}, 2'); A(f's_lshl_b32 s{sVOFF}, s{sVOFF}, 14')
    A(f's_sub_u32 s{sNIT}, s{sB1}, s{sB0}'); A(f's_sub_u32 s{sNIT}, s{sNIT}, 4'); A(f's_lshr_b32 s{sNIT}, s{sNIT}, 1')
    st.wait_vm('K0'); A('s_barrier')
    A(f's_cmp_eq_u32 s{sFL}, 1'); A('s_cbranch_scc0 k2_nopub')
    A(f's_mov_b32 s{sFL}, 0')
    A(f's_cmp_eq_u32 s{sW}, 0'); A('s_cbranch_scc0 k2_nopub')
    A('v_mov_b32 v27, 1'); A('s_mov_b64 exec, 1')
    A(f'buffer_store_dword v27, v9, s[{S_DBG}:{S_DBG+3}], 0 offen sc1')
    A('s_mov_b64 exec, -1')
    A.label('k2_nopub')
    ST.stamp(A, 'p2_start')
    A(f'v_add_u32 v{vKA}, s{sA}, v{vL16}')
    rd = lambda f: Ins(f'ds_read_b128 {RING[f % NF]}, v{vKA} offset:{1024*f}', lds=f'f{f}')
    for f in range(LA): st.emit(rd(f))
    mf = qk_mfmas(0, 'f', base=0, czero=True)
    fill = {g: [] for g in range(-1, 32)}
    for f in range(16):
        if f + LA < 16: fill[2*f].append(rd(f + LA))
    st.emit_all(gapfill(mf, fill))
    if fused:
        A(f's_cmp_eq_u32 s{sQST}, 1'); A('s_cbranch_scc0 k2_noqw'); A('s_waitcnt vmcnt(0)'); A.label('k2_noqw')
    st.wait_vm('V0'); A('s_barrier')
    if fused:
        A(f's_cmp_eq_u32 s{sQST}, 1'); A('s_cbranch_scc0 k2_noqf')
        A(f's_mov_b32 s{sQST}, 0')
        A(f's_lshl_b32 s60, s{sH}, 7'); A(f's_lshl_b32 s61, s{sPI}, 2'); A('s_add_u32 s60, s60, s61'); A(f's_add_u32 s60, s60, {F_Q}')
        set_flag(A, 'k2_qflag', S_DBG, sW, 60, 27, 28)
        A.label('k2_noqf')
    A(f's_cmp_eq_u32 s{sNIT}, 0'); A('s_cbranch_scc0 k2_nomask0')
    A(f's_cmp_eq_u32 s{sWE}, 0'); A('s_cbranch_scc0 k2_nomask0')
    A('s_nop 4')
    apply_mask(A, 0)
    A.label('k2_nomask0')
    A('s_nop 4')
    rowmax_update(A, 0, first=True)
    for x in book_start(0): A(x)
    emit_dma(st, dma_v())
    A(f's_cmp_eq_u32 s{sNIT}, 0'); A('s_cbranch_scc1 k2_tail_entry')
    emit_dma(st, dma_k())
    stm = Stream(A)
    for k in range(16, 16 + LA): stm.emit(frag_read(k, 0, 'c'))
    q_mid = list(stm.q)
    A('s_branch k2_mid')
    A.label('k2_tail_entry')
    stm2 = Stream(A)
    for k in range(16, 16 + LA): stm2.emit(frag_read(k, 0, 'c'))
    A('s_branch k2_tmid')
    qhead = [f'n{k}' for k in range(LA)]
    A.label('k2_loop')
    s0 = Stream(A, qhead)
    full_iter(s0, 0, 'k2_m0', mid_label='k2_mid')
    A('s_waitcnt vmcnt(12)'); A('s_barrier')
    full_iter(s0, 1, 'k2_m1')
    assert s0.q == qhead, s0.q
    A('s_waitcnt vmcnt(12)'); A('s_barrier')
    A(f's_sub_u32 s{sNIT}, s{sNIT}, 1'); A(f's_cmp_lg_u32 s{sNIT}, 0'); A('s_cbranch_scc1 k2_loop')
    ST.stamp(A, 'p2_loop')
    slow = [(0, 'k2_m0'), (1, 'k2_m1')]
    for tau in range(4):
        p = tau & 1
        lab = f'k2_t{tau}'
        A.label(lab)
        dv = tau < 2
        vm = [8, 4, 0, 0][tau]
        if tau in (1, 3):
            A(f's_cmp_eq_u32 s{sMODE}, 2'); A(f's_cbranch_scc1 {lab}_nowo')
            Stream(A).emit_all(slab_dma(tau // 2, sT3_))
            A.label(f'{lab}_nowo')
        if tau > 0:
            A(f's_cmp_ge_u32 s{sWE}, {tau}'); A(f's_cbranch_scc0 {lab}_part')
        A(f's_cmp_eq_u32 s{sWE}, {tau}'); A(f's_cbranch_scc0 {lab}_nomask')
        A('s_nop 7')
        apply_mask(A, p)
        A.label(f'{lab}_nomask')
        s1 = Stream(A, qhead)
        full_iter(s1, p, lab, dv=dv, dk=False, mid_label=('k2_tmid' if tau == 0 else None))
        slow.append((p, lab))
        assert s1.q == qhead
        if tau > 0:
            A(f's_branch {lab}_done')
            A.label(f'{lab}_part')
            if dv:
                emit_dma(Stream(A), dma_v())
            A(f's_cmp_eq_u32 s{sWE}, {tau-1}'); A(f's_cbranch_scc0 {lab}_none')
            s2 = Stream(A, qhead)
            pv_only(s2, p)
            A.label(f'{lab}_none')
            for x in book_end(): A(x)
            A.label(f'{lab}_done')
        if tau == 2:
            A(f's_cmp_eq_u32 s{sMODE}, 1'); A('s_cbranch_scc0 k2_nopoll')
            A(f's_mov_b32 s60, 0')
            A.label('k2_poll')
            A(f'buffer_load_dword v27, v9, s[{S_DBG}:{S_DBG+3}], 0 offen sc1')
            A('s_waitcnt vmcnt(0)')
            A('v_readfirstlane_b32 s61, v27')
            A('s_add_u32 s60, s60, 1')
            A('s_cmp_lg_u32 s61, 0'); A('s_cbranch_scc1 k2_polled')
            A('s_sleep 8')
            A('s_cmp_lt_u32 s60, 0x40000'); A('s_cbranch_scc1 k2_poll')
            A.label('k2_polled')
            for f in range(17):
                if f % 4 == 0: A(f's_mov_b32 s61, {4096*(f//4)}')
                A(f'buffer_load_dwordx4 {BO(f)}, v8, s[{S_BO}:{S_BO+3}], s61 offen offset:{1024*(f % 4)} sc1')
            A('s_barrier')
            A('s_branch k2_t3')
            A.label('k2_nopoll')
        if tau == 1:
            A(f's_cmp_eq_u32 s{sMODE}, 2'); A(f's_cbranch_scc1 {lab}_w4')
            A('s_waitcnt vmcnt(12)'); A(f's_branch {lab}_wd')
            A.label(f'{lab}_w4'); A('s_waitcnt vmcnt(4)'); A.label(f'{lab}_wd')
        elif tau < 3: A(f's_waitcnt vmcnt({vm})')
        A('s_barrier')
    A(f's_cmp_ge_u32 s{sWE}, 3'); A('s_cbranch_scc0 k2_fin')
    s3 = Stream(A, qhead)
    pv_only(s3, 0)
    A.label('k2_fin')
    A('s_waitcnt lgkmcnt(0)')
    A('s_barrier')
    ST.stamp(A, 'p2_tail')
    A('s_nop 7')
    for qb in range(2): xreduce(A, vL[qb], 'v_add_f32', vT[0])
    A(f's_cmp_eq_u32 s{sMODE}, 1'); A('s_cbranch_scc1 k2_merge')
    for qb in range(2): A(f'v_rcp_f32 v{vMX[qb]}, v{vL[qb]}')
    A('s_nop 0')
    for s in range(8):
        for qb in range(2):
            t0, t1 = O(2*s, qb), O(2*s+1, qb)
            for t in (t0, t1):
                for k in range(4): A(f'v_mul_f32 {t[k]}, {t[k]}, v{vMX[qb]}')
            A(f'v_cvt_pk_bf16_f32 {t0[0]}, {t0[0]}, {t0[1]}'); A(f'v_cvt_pk_bf16_f32 {t0[1]}, {t0[2]}, {t0[3]}')
            A(f'v_cvt_pk_bf16_f32 {t0[2]}, {t1[0]}, {t1[1]}'); A(f'v_cvt_pk_bf16_f32 {t0[3]}, {t1[2]}, {t1[3]}')
    A(f's_cmp_eq_u32 s{sMODE}, 2'); A('s_cbranch_scc0 k2_oproj')
    for f in range(16):
        if f % 4 == 0: A(f's_mov_b32 s61, {4096*(f//4)}')
        A(f'buffer_store_dwordx4 {O(2*(f//2), f % 2)}, v8, s[{S_BO}:{S_BO+3}], s61 offen offset:{1024*(f % 4)} sc1')
    A(f'v_mov_b32 v28, {NM(0)[0]}'); A(f'v_mov_b32 v29, v{vL[0]}'); A(f'v_mov_b32 v30, {NM(1)[0]}'); A(f'v_mov_b32 v31, v{vL[1]}')
    A('s_mov_b32 s61, 0x4000')
    A(f'buffer_store_dwordx4 v[28:31], v8, s[{S_BO}:{S_BO+3}], s61 offen sc1')
    A(f's_mov_b32 s{sFL}, 1')
    A(f's_mov_b32 s{sQT}, s{sPI}'); A(f's_mov_b32 s{sB0}, 0'); A(f's_lshl_b32 s{sB1}, s{sQT}, 2'); A(f's_add_u32 s{sB1}, s{sB1}, 4')
    A(f's_mov_b32 s{sWE}, s{sW}'); A(f's_mov_b32 s{sMODE}, 0')
    if fused:
        for k in range(64): A(f'v_accvgpr_mov_b32 a{k}, a{96+k}')
        A(f's_mov_b32 s{sQLD}, 0')
    A('s_nop 1')
    A('s_branch k2_seg')
    A.label('k2_merge')
    A('s_waitcnt vmcnt(0)')
    for k in range(4): A(f'v_accvgpr_read_b32 v{28+k}, {BO(16)[k]}')
    a_ = [216, 217]; b_ = [218, 219]
    for qb in range(2):
        nmB, lB = 28 + 2*qb, 29 + 2*qb
        A(f'v_min_f32 v27, {NM(qb)[0]}, v{nmB}')
        A(f'v_sub_f32 v{a_[qb]}, v27, {NM(qb)[0]}')
        A(f'v_sub_f32 v{b_[qb]}, v27, v{nmB}')
        A(f'v_exp_f32 v{a_[qb]}, v{a_[qb]}'); A(f'v_exp_f32 v{b_[qb]}, v{b_[qb]}')
        A('s_nop 0')
        A(f'v_mul_f32 v{b_[qb]}, v{b_[qb]}, v{lB}')
        A(f'v_fma_f32 v27, v{vL[qb]}, v{a_[qb]}, v{b_[qb]}')
        A('v_rcp_f32 v27, v27'); A('s_nop 0')
        A(f'v_mul_f32 v{a_[qb]}, v{a_[qb]}, v27'); A(f'v_mul_f32 v{b_[qb]}, v{b_[qb]}, v27')
    A('s_mov_b32 s61, 0xffff0000')
    for s in range(8):
        for qb in range(2):
            t0, t1 = O(2*s, qb), O(2*s+1, qb)
            f = 2*s + qb
            for k in range(4): A(f'v_accvgpr_read_b32 v{220+k}, {BO(f)[k]}')
            els = [t0[0], t0[1], t0[2], t0[3], t1[0], t1[1], t1[2], t1[3]]
            for k in range(4):
                A(f'v_lshlrev_b32 v{224+2*k}, 16, v{220+k}'); A(f'v_and_b32 v{225+2*k}, s61, v{220+k}')
            for k in range(8): A(f'v_mul_f32 v{224+k}, v{224+k}, v{b_[qb]}')
            for k in range(8): A(f'v_fma_f32 {els[k]}, {els[k]}, v{a_[qb]}, v{224+k}')
            A(f'v_cvt_pk_bf16_f32 {t0[0]}, {t0[0]}, {t0[1]}'); A(f'v_cvt_pk_bf16_f32 {t0[1]}, {t0[2]}, {t0[3]}')
            A(f'v_cvt_pk_bf16_f32 {t0[2]}, {t1[0]}, {t1[1]}'); A(f'v_cvt_pk_bf16_f32 {t0[3]}, {t1[2]}, {t1[3]}')
    A.label('k2_oproj')
    ST.stamp(A, 'p2_norm')
    oproj(A)
    ST.stamp(A, 'p2_oproj')
    if fused:
        A('s_waitcnt vmcnt(0)'); A('s_barrier')
        A(f's_lshl_b32 s60, s{sQT}, 7'); A(f's_lshl_b32 s61, s{sH}, 2'); A('s_add_u32 s60, s60, s61'); A(f's_add_u32 s60, s60, {F_P}')
        set_flag(A, 'k2_pflag', S_DBG, sW, 60, 27, 28)
        ST.stamp(A, 'p2_flag')
        A('s_branch k2_done')
        for p, lab in slow: slow_path(A, p, lab)
        A.label('k2_done')
        return
    if stamps:
        A('s_waitcnt vmcnt(0)'); ST.stamp(A, 'k2_drain')
    ST.dump(A, f's{sWS}', f's{sWS+1}', sW, 'k2_dumpend')
    A('s_branch k2_end')
    for p, lab in slow: slow_path(A, p, lab)
    A.label('k2_end')
    A('s_endpgm')
```

```python
import sys
from asmlib import *
import k1, k2
NAME = 'sequential_preLN__compressed_kv_cla__geglu_ffn__prompt'
def build(kernels, stamp=None, out='all.s', official=False):
    A = Asm()
    if official:
        for l in open('cdna_kernels/' + NAME + '.s.ref').read().split('\n'):
            if l.startswith(';') and '@launch' not in l and 'Override launch' not in l and 'grid=ceil' not in l: A(l)
    spec = {'k1': (256, 256, 163840), 'k2': (256, 256, 131072), 'k3': (256, 448, 0), 'k4': (224, 256, 65536), 'k5': (224, 256, 0)}
    mods = {}
    for k in kernels:
        mods[k] = __import__(k)
        if hasattr(mods[k], 'LAUNCH'): spec[k] = mods[k].LAUNCH
        g, b, l = spec[k]
        A(f'; @launch kernel={k}_kernel grid=({g},1,1) block=({b},1,1) lds={l}')
    A('.amdgcn_target "amdgcn-amd-amdhsa--gfx950"')
    for k in kernels:
        n0 = len(A.lines)
        getattr(mods[k], 'gen_' + k)(A, stamps=(stamp == k))
        v = check_hazards(A.lines[n0:], k)
        print(k, len(v), 'hazard reports;', len(A.lines) - n0, 'lines')
    for k in kernels:
        kernel_desc(A, k + '_kernel', *getattr(mods[k], 'REGS', (512, 256, 102)))
    txt = A.text()
    if official and kernels == ['mega']:
        txt = txt.replace('; @launch kernel=mega_kernel grid', '; @launch grid').replace('mega_kernel', NAME + '_kernel')
    open(out, 'w').write(txt)
    print(out, len(A.text()), 'bytes')
if __name__ == '__main__':
    ks = sys.argv[1].split(',')
    import os, json
    if os.environ.get('K1OPT'): k1.set_opt(**json.loads(os.environ['K1OPT']))
    stamp = sys.argv[2] if len(sys.argv) > 2 and sys.argv[2] != '-' else None
    out = sys.argv[3] if len(sys.argv) > 3 else 'all.s'
    if out == 'official':
        build(ks, None, 'cdna_kernels/' + NAME + '.s', official=True)
    else:
        build(ks, stamp, out)
```
